```python
import torch

def _softmax(x, axis=-1):
    return torch.softmax(x, dim=axis)
def _gelu(x):
    return torch.nn.functional.gelu(x, approximate="tanh")
def _silu(x):
    return torch.nn.functional.silu(x)
def _sigmoid(x):
    return torch.sigmoid(x)
def _layernorm(x, axis=-1, eps=1e-5):
    m = x.mean(dim=axis, keepdim=True)
    v = x.var(dim=axis, keepdim=True, unbiased=False)
    return (x - m) / torch.sqrt(v + eps)
def _scatter_add(tgt, idx, src, axis=0):
    return tgt.clone().index_add_(axis, idx, src)
def _segment_sum(src, seg, n):
    out = torch.zeros((n,) + src.shape[1:], dtype=src.dtype)
    return out.index_add_(0, seg, src)
def _pad(x, pw):
    flat = tuple(v for pair in reversed(pw) for v in pair)
    return torch.nn.functional.pad(x, flat)

kernel_name = 'parallel_sum__sliding_local_dilated__glu_gated_reglu__prompt'

def setup_inputs():

    _w = (lambda a: (lambda t: t.to(torch.bfloat16) if t.is_floating_point() else t)(torch.as_tensor(a)))
    def _A_setup():
        B, S, D = 1, 2048, 576
        return {
            "x": _w((lambda *s: torch.randn(*s, dtype=torch.bfloat16) * 0.05)(B, S, D)),
            "wqkv": _w((lambda *s: torch.randn(*s, dtype=torch.bfloat16) * 0.05)(D, 3 * D)),
            "wo": _w((lambda *s: torch.randn(*s, dtype=torch.bfloat16) * 0.05)(D, D)),
        }
    _A_in = _A_setup()

    def _B_setup():
        B, S, D, F = 1, 2048, 576, 4608
        return {
            "x": _w((lambda *s: torch.randn(*s, dtype=torch.bfloat16) * 0.05)(B, S, D)),
            "W_gate": _w((lambda *s: torch.randn(*s, dtype=torch.bfloat16) * 0.8)(D, F) * (2.0 / D) ** 0.5),
            "W_up": _w((lambda *s: torch.randn(*s, dtype=torch.bfloat16) * 0.8)(D, F) * (2.0 / D) ** 0.5),
            "W_down": _w((lambda *s: torch.randn(*s, dtype=torch.bfloat16) * 0.8)(F, D) * (1.0 / F) ** 0.5),
        }
    _B_in = _B_setup()

    return {
        "A_x": _A_in["x"],
        "A_wqkv": _A_in["wqkv"],
        "A_wo": _A_in["wo"],
        "B_x": _B_in["x"],
        "B_W_gate": _B_in["W_gate"],
        "B_W_up": _B_in["W_up"],
        "B_W_down": _B_in["W_down"],
    }

def reference(A_x, A_wqkv, A_wo, B_x, B_W_gate, B_W_up, B_W_down):
    def _A_ref(x, wqkv, wo):
        B, S, D = x.shape
        H = 32; Dh = D // H
        W, dil = 8, 2
        qkv = (lambda x, *d: x.permute(*d))((x @ wqkv).reshape(B, S, 3, H, Dh), 2, 0, 3, 1, 4)
        q, k, v = qkv[0], qkv[1], qkv[2]
        scale = Dh ** -0.5
        pos = torch.arange(S)
        off = torch.arange(W) * dil
        idx = pos[:, None] - off[None, :]
        mask = idx >= 0
        idx_c = torch.where(mask, idx, 0).reshape(-1)
        kg = k[:, :, idx_c, :].reshape(B, H, S, W, Dh)
        vg = v[:, :, idx_c, :].reshape(B, H, S, W, Dh)
        logits = torch.einsum("bhsd,bhswd->bhsw", q, kg) * scale
        logits = torch.where(mask[None, None, :, :], logits, -1e9)
        attn = _softmax(logits, axis=-1)
        o = torch.einsum("bhsw,bhswd->bhsd", attn, vg)
        return (lambda x, *d: x.permute(*d))(o, 0, 2, 1, 3).reshape(B, S, D) @ wo

    def _B_ref(x, W_gate, W_up, W_down):
        gate = torch.einsum("bsd,df->bsf", x, W_gate)
        up = torch.einsum("bsd,df->bsf", x, W_up)
        gate = gate * (lambda x, dt: x.to(dt))(gate > 0, gate.dtype)
        h = gate * up
        return torch.einsum("bsf,fd->bsd", h, W_down)

    x = A_x
    xn = _layernorm(x, axis=-1)
    return x + _A_ref(xn, A_wqkv, A_wo) + _B_ref(xn, B_W_gate, B_W_up, B_W_down)
```

```python
import sys

NAME = "parallel_sum__sliding_local_dilated__glu_gated_reglu__prompt"

XN_OFF = 0
XN_BYTES = 18 * 2048 * 64
HC_OFF = 0x400000
HC_BYTES = 162 * 2048 * 64
KBS = 2048 * 64

class A:
    def __init__(self):
        self.l = []
    def __call__(self, s):
        for line in s.strip("\n").split("\n"):
            self.l.append("    " + line.strip())
    def label(self, s):
        self.l.append(s + ":")
    def raw(self, s):
        self.l.append(s)
    def text(self):
        return "\n".join(self.l) + "\n"

def srd(a, d, base, nbytes, off=0):
    if off:
        a(f"s_add_u32 s{d}, s{base}, {hex(off)}")
        a(f"s_addc_u32 s{d+1}, s{base+1}, 0")
    else:
        a(f"s_mov_b32 s{d}, s{base}")
        a(f"s_mov_b32 s{d+1}, s{base+1}")
    a(f"s_mov_b32 s{d+2}, {hex(nbytes)}")
    a(f"s_mov_b32 s{d+3}, 0x00020000")

def kernel_header(a, name):
    a.raw(f".globl {name}")
    a.raw(".p2align 8")
    a.raw(f".type {name},@function")
    a.label(name)

def kd(name, vgpr, sgpr=102):
    acc = (vgpr + 3) // 4 * 4
    return f""".amdhsa_kernel {name}
  .amdhsa_next_free_vgpr {vgpr}
  .amdhsa_next_free_sgpr {sgpr}
  .amdhsa_accum_offset {acc}
  .amdhsa_group_segment_fixed_size 0
  .amdhsa_kernarg_size 80
  .amdhsa_user_sgpr_count 2
  .amdhsa_user_sgpr_kernarg_segment_ptr 1
  .amdhsa_system_sgpr_workgroup_id_x 1
.end_amdhsa_kernel
"""

def gen_ln(a):
    kernel_header(a, "ln_kernel")
    a("""
    s_cmp_ge_u32 s2, 256
    s_cbranch_scc1 LN_END
    s_load_dwordx2 s[4:5], s[0:1], 0
    s_load_dwordx2 s[6:7], s[0:1], 72
    v_lshrrev_b32 v1, 3, v0
    v_and_b32 v2, 7, v0                ; j
    s_lshl_b32 s3, s2, 3
    v_add_u32 v1, s3, v1               ; row
    v_lshrrev_b32 v3, 2, v2            ; j>>2
    v_and_b32 v4, 3, v2                ; g
    s_movk_i32 s16, 1152
    v_mul_lo_u32 v5, v1, s16
    v_lshl_add_u32 v5, v3, 6, v5
    v_lshl_add_u32 v5, v4, 3, v5
    v_lshlrev_b32 v6, 6, v1
    v_lshl_add_u32 v6, v4, 4, v6
    v_lshl_add_u32 v6, v3, 17, v6
    s_waitcnt lgkmcnt(0)
    """)
    srd(a, 8, 4, 2048 * 1152)
    srd(a, 12, 6, XN_BYTES, XN_OFF)
    for i in range(9):
        a(f"buffer_load_dwordx2 v[{8+4*i}:{9+4*i}], v5, s[8:11], 0 offen offset:{128*i}")
        a(f"buffer_load_dwordx2 v[{10+4*i}:{11+4*i}], v5, s[8:11], 0 offen offset:{128*i+32}")
    a("v_mov_b32 v50, 0")
    a("v_mov_b32 v51, 0")
    for i in range(9):
        a(f"s_waitcnt vmcnt({2*(8-i)})")
        for d in range(4):
            src = 8 + 4 * i + d
            lo = 64 + 8 * i + 2 * d
            a(f"v_lshlrev_b32 v{lo}, 16, v{src}")
            a(f"v_and_b32 v{lo+1}, 0xffff0000, v{src}")
            a(f"v_add_f32 v50, v50, v{lo}")
            a(f"v_add_f32 v51, v51, v{lo+1}")
    a("v_add_f32 v50, v50, v51")
    def red8(r):
        a(f"""
        s_nop 1
        v_add_f32_dpp v{r}, v{r}, v{r} quad_perm:[1,0,3,2] row_mask:0xf bank_mask:0xf
        s_nop 1
        v_add_f32_dpp v{r}, v{r}, v{r} quad_perm:[2,3,0,1] row_mask:0xf bank_mask:0xf
        s_nop 1
        v_add_f32_dpp v{r}, v{r}, v{r} row_half_mirror row_mask:0xf bank_mask:0xf
        """)
    red8(50)
    a("v_mul_f32 v50, 0x3ae38e39, v50     ; /576 -> mean (f32)")
    a("v_mov_b32 v52, 0")
    a("v_mov_b32 v53, 0")
    for e in range(0, 72, 2):
        a(f"v_sub_f32 v54, v{64+e}, v50")
        a(f"v_sub_f32 v55, v{65+e}, v50")
        a(f"v_fmac_f32 v52, v54, v54")
        a(f"v_fmac_f32 v53, v55, v55")
    a("v_add_f32 v52, v52, v53")
    red8(52)
    a("""
    v_mul_f32 v52, 0x3ae38e39, v52     ; var f32
    v_cvt_pk_bf16_f32 v54, v50, v52
    v_lshlrev_b32 v50, 16, v54         ; mean_b
    v_and_b32 v52, 0xffff0000, v54     ; var_b
    v_add_f32 v52, 0x3727c5ac, v52     ; + 1e-5
    v_cvt_pk_bf16_f32 v54, v52, v52
    v_lshlrev_b32 v52, 16, v54
    v_sqrt_f32 v52, v52
    s_nop 0
    v_cvt_pk_bf16_f32 v54, v52, v52
    v_lshlrev_b32 v52, 16, v54
    v_rcp_f32 v53, v52                 ; rinv
    s_nop 0
    """)
    for i in range(9):
        for d in range(4):
            lo = 64 + 8 * i + 2 * d
            dst = 8 + 4 * i + d
            a(f"""
            v_sub_f32 v54, v{lo}, v50
            v_sub_f32 v55, v{lo+1}, v50
            v_cvt_pk_bf16_f32 v56, v54, v55
            v_lshlrev_b32 v54, 16, v56
            v_and_b32 v55, 0xffff0000, v56
            v_mul_f32 v56, v54, v53
            v_mul_f32 v57, v55, v53
            v_fma_f32 v58, -v56, v52, v54
            v_fma_f32 v59, -v57, v52, v55
            v_fmac_f32 v56, v58, v53
            v_fmac_f32 v57, v59, v53
            v_cvt_pk_bf16_f32 v{dst}, v56, v57
            """)
        a(f"s_mov_b32 s17, {2*KBS*i}")
        a(f"buffer_store_dwordx4 v[{8+4*i}:{11+4*i}], v6, s[12:15], s17 offen")
    a.label("LN_END")
    a("s_endpgm")

G_STAGE = 40960
Q_STAGE = 37888
Q_RS = 900

def gen_g1(a):
    kernel_header(a, "g1_kernel")
    a("""
    s_cmp_ge_u32 s2, 256
    s_cbranch_scc1 G1_END
    s_load_dwordx2 s[4:5], s[0:1], 72      ; ws
    s_load_dwordx2 s[6:7], s[0:1], 32      ; W_gate
    s_load_dwordx2 s[8:9], s[0:1], 40      ; W_up
    s_load_dwordx2 s[10:11], s[0:1], 8     ; wqkv
    v_lshrrev_b32 v1, 6, v0
    v_and_b32 v0, 63, v0                   ; lane
    s_nop 0
    v_readfirstlane_b32 s3, v1
    s_waitcnt lgkmcnt(0)
    """)
    srd(a, 12, 4, XN_BYTES, XN_OFF)
    srd(a, 16, 4, HC_BYTES, HC_OFF)
    a("""
    s_cmp_ge_u32 s2, 192
    s_cbranch_scc1 QKV_ROLE
    """)
    gen_g1_gateup(a)
    a.label("QKV_ROLE")
    gen_g1_qkv(a)
    a.label("G1_END")
    a("s_endpgm")

def gen_g1_gateup(a):
    a("""
    s_lshr_b32 s20, s2, 3
    s_and_b32 s20, s20, 7                  ; mi
    s_and_b32 s21, s2, 7
    s_mul_i32 s21, s21, 3
    s_lshr_b32 s22, s2, 6
    s_add_u32 s21, s21, s22                ; fi
    s_lshr_b32 s22, s3, 1                  ; tw = w>>1  (0..3)
    s_and_b32 s23, s3, 1                   ; fw = w&1
    """)
    a("""
    s_cmp_ge_u32 s3, 4
    s_cselect_b32 s24, s8, s6
    s_cselect_b32 s25, s9, s7
    s_mov_b32 s26, 5308416
    s_mov_b32 s27, 0x00020000
    """)
    a("""
    s_lshl_b32 s28, s20, 14                ; 256*mi*64
    s_lshl_b32 s36, s3, 11                 ; 2w*16 rows*64B = w*2048
    s_add_u32 s28, s28, s36
    s_mov_b32 s30, s36
    s_and_b32 s36, s3, 3                   ; a
    s_mul_i32 s29, s36, 73728              ; 8a*9216
    s_mul_i32 s37, s21, 384
    s_add_u32 s29, s29, s37
    s_mul_i32 s31, s36, 3072
    s_lshr_b32 s37, s3, 2
    s_mul_i32 s37, s37, 12288
    s_add_u32 s31, s31, s37
    s_add_u32 s31, s31, 16384
    """)
    a("""
    v_lshrrev_b32 v10, 2, v0
    v_and_b32 v11, 3, v0
    v_lshrrev_b32 v12, 4, v0
    v_xor_b32 v11, v11, v12
    v_lshlrev_b32 v2, 6, v10
    v_lshl_add_u32 v2, v11, 4, v2
    """)
    for b in range(3):
        a(f"""
        v_add_u32 v10, {64*b}, v0
        v_mul_u32_u24 v11, 2731, v10
        v_lshrrev_b32 v11, 16, v11             ; k = P/24
        v_mul_u32_u24 v12, 24, v11
        v_sub_u32 v12, v10, v12                ; u'
        v_lshrrev_b32 v13, 1, v11
        v_and_b32 v13, 1, v13
        v_lshlrev_b32 v13, 2, v13
        v_xor_b32 v12, v12, v13                ; u
        v_mul_u32_u24 v11, 9216, v11
        v_lshl_add_u32 v{3+b}, v12, 4, v11
        """)
        if b:
            a(f"v_subrev_u32 v{3+b}, {1024*b}, v{3+b}")
    a("""
    v_and_b32 v10, 31, v0
    s_lshl_b32 s36, s22, 6
    v_add_u32 v10, s36, v10
    v_lshrrev_b32 v11, 5, v0               ; hh
    v_lshrrev_b32 v12, 2, v0
    v_and_b32 v12, 3, v12                  ; r == (l>>2)&3
    v_xor_b32 v13, v11, v12
    v_lshlrev_b32 v6, 6, v10
    v_lshl_add_u32 v6, v13, 4, v6
    v_xor_b32 v7, 32, v6
    """)
    a("""
    v_lshrrev_b32 v13, 4, v0
    v_and_b32 v13, 1, v13
    v_and_b32 v14, 3, v0
    v_lshl_add_u32 v13, v13, 2, v14        ; c
    v_and_b32 v14, 1, v13                  ; hho
    v_lshrrev_b32 v15, 1, v13              ; q
    v_lshrrev_b32 v16, 1, v15              ; q>>1
    v_and_b32 v15, 1, v15                  ; q&1
    v_lshl_add_u32 v14, v14, 1, v16
    v_lshl_add_u32 v14, v15, 2, v14        ; e
    v_lshl_add_u32 v15, v11, 2, v12        ; 4hh + r
    v_mul_u32_u24 v15, 384, v15
    v_lshl_add_u32 v15, v14, 3, v15
    s_mul_i32 s36, s23, 192
    s_add_u32 s36, s36, 16384
    v_add_u32 v15, s36, v15                ; const
    v_lshrrev_b32 v16, 1, v12              ; b
    v_lshlrev_b32 v16, 6, v16              ; 64b
    s_cmp_eq_u32 s23, 0
    s_cselect_b32 s36, 1, -1
    v_mul_lo_u32 v16, v16, s36
    v_add_u32 v8, v15, v16
    v_sub_u32 v9, v15, v16
    """)
    def dma(bufreg):
        a(f"""
        s_add_u32 m0, s{bufreg}, s30
        s_nop 0
        buffer_load_dwordx4 v2, s[12:15], s28 offen lds
        buffer_load_dwordx4 v2, s[12:15], s28 offen offset:1024 lds
        s_add_u32 m0, s{bufreg}, s31
        s_add_u32 s28, s28, {KBS}
        buffer_load_dwordx4 v3, s[24:27], s29 offen lds
        buffer_load_dwordx4 v4, s[24:27], s29 offen offset:1024 lds
        buffer_load_dwordx4 v5, s[24:27], s29 offen offset:2048 lds
        s_add_u32 s29, s29, {32*9216}
        """)
    for st in range(3):
        a(f"s_mov_b32 s32, {st*G_STAGE}")
        dma(32)
    a(f"s_mov_b32 s32, {3*G_STAGE}")
    a("s_mov_b32 s33, 0")
    ACC = 64
    for r in range(192):
        a(f"v_mov_b32 v{ACC+r}, 0")
    TB = [40, 48]
    WB = [16, 20, 24, 28, 32, 36]
    def set_addrs():
        a("""
        v_add_u32 v10, s33, v6
        v_add_u32 v11, s33, v7
        v_add_u32 v12, s33, v8
        v_add_u32 v13, s33, v9
        """)
    def rd_tok(buf, ks):
        ad = 10 + ks
        a(f"ds_read_b128 v[{TB[buf]}:{TB[buf]+3}], v{ad}")
        a(f"ds_read_b128 v[{TB[buf]+4}:{TB[buf]+7}], v{ad} offset:2048")
    def rd_w(j, ks):
        jj = j % 3
        mat = j // 3
        ad = 12 + (jj & 1)
        off = 64 * jj + 3072 * ks + 12288 * mat
        w = WB[j]
        a(f"ds_read_b64_tr_b16 v[{w}:{w+1}], v{ad} offset:{off}")
        a(f"ds_read_b64_tr_b16 v[{w+2}:{w+3}], v{ad} offset:{off+6144}")
    def mfma(j, buf):
        w = WB[j]
        for tt in range(2):
            acc = ACC + (j * 2 + tt) * 16
            t = TB[buf] + 4 * tt
            a(f"v_mfma_f32_32x32x16_bf16 v[{acc}:{acc+15}], v[{w}:{w+3}], v[{t}:{t+3}], v[{acc}:{acc+15}]")
    a("s_waitcnt vmcnt(10)")
    a("s_barrier")
    set_addrs()
    rd_tok(0, 0)
    for j in range(6):
        rd_w(j, 0)
    a("s_mov_b32 s34, 0")
    a.label("GU_LOOP")
    rd_tok(1, 1)
    for j in range(6):
        a("s_waitcnt lgkmcnt(12)")
        mfma(j, 0)
        rd_w(j, 1)
    a("s_waitcnt vmcnt(5)")
    a("s_barrier")
    dma(32)
    a(f"""
    s_add_u32 s32, s32, {G_STAGE}
    s_cmp_eq_u32 s32, {4*G_STAGE}
    s_cselect_b32 s32, 0, s32
    s_add_u32 s33, s33, {G_STAGE}
    s_cmp_eq_u32 s33, {4*G_STAGE}
    s_cselect_b32 s33, 0, s33
    """)
    set_addrs()
    rd_tok(0, 0)
    for j in range(6):
        a("s_waitcnt lgkmcnt(12)")
        mfma(j, 1)
        rd_w(j, 0)
    a("""
    s_add_u32 s34, s34, 1
    s_cmp_lt_u32 s34, 18
    s_cbranch_scc1 GU_LOOP
    """)
    a("""
    s_waitcnt lgkmcnt(0)
    s_nop 15
    """)
    a("""
    v_and_b32 v10, 31, v0
    s_lshl_b32 s36, s20, 8
    s_lshl_b32 s37, s22, 6
    s_add_u32 s36, s36, s37
    v_add_u32 v10, s36, v10
    v_lshlrev_b32 v10, 6, v10
    v_lshrrev_b32 v11, 5, v0
    v_lshl_add_u32 v10, v11, 5, v10
    s_mul_i32 s36, s21, 6
    s_mul_i32 s37, s23, 3
    s_add_u32 s36, s36, s37
    s_lshl_b32 s36, s36, 17                ; kb*131072
    """)
    for j in range(3):
        for tt in range(2):
            g = ACC + (j * 2 + tt) * 16
            u = ACC + ((j + 3) * 2 + tt) * 16
            o = 16 + 8 * tt
            for p in range(8):
                a(f"""
                v_max_f32 v{g+2*p}, 0, v{g+2*p}
                v_max_f32 v{g+2*p+1}, 0, v{g+2*p+1}
                v_cvt_pk_bf16_f32 v32, v{g+2*p}, v{g+2*p+1}
                v_cvt_pk_bf16_f32 v33, v{u+2*p}, v{u+2*p+1}
                v_lshlrev_b32 v34, 16, v32
                v_and_b32 v35, 0xffff0000, v32
                v_lshlrev_b32 v36, 16, v33
                v_and_b32 v37, 0xffff0000, v33
                v_mul_f32 v34, v34, v36
                v_mul_f32 v35, v35, v37
                v_cvt_pk_bf16_f32 v{o+p}, v34, v35
                """)
            a(f"buffer_store_dwordx4 v[{o}:{o+3}], v10, s[16:19], s36 offen offset:{2048*tt}")
            a(f"buffer_store_dwordx4 v[{o+4}:{o+7}], v10, s[16:19], s36 offen offset:{2048*tt+16}")
        a(f"s_add_u32 s36, s36, {KBS}")
    a("s_endpgm")

def gen_g1_qkv(a):
    a("""
    s_sub_u32 s20, s2, 192
    s_and_b32 s21, s20, 3                  ; hg
    s_lshr_b32 s22, s20, 3
    s_lshl_b32 s22, s22, 1
    s_lshr_b32 s23, s20, 2
    s_and_b32 s23, s23, 1
    s_add_u32 s20, s22, s23                ; mi (0..15)
    s_lshr_b32 s22, s3, 2                  ; th = w>>2
    s_and_b32 s23, s3, 3                   ; cg = w&3
    """)
    srd(a, 24, 10, 576 * 3456)
    def wvoff(dst, nexpr_sreg):
        a(f"""
        v_add_u32 v10, s{nexpr_sreg}, v0
        v_mul_u32_u24 v11, 1214, v10
        v_lshrrev_b32 v11, 16, v11
        v_mul_u32_u24 v12, 54, v11
        v_sub_u32 v12, v10, v12                ; u
        v_mul_u32_u24 v13, 3641, v12
        v_lshrrev_b32 v13, 16, v13             ; seg = u/18
        v_mul_u32_u24 v14, 18, v13
        v_sub_u32 v14, v12, v14                ; c
        v_mul_u32_u24 v11, 3456, v11
        v_mul_u32_u24 v13, 1152, v13
        v_add_u32 v11, v11, v13
        v_lshl_add_u32 v{dst}, v14, 4, v11
        """)
    for i in range(4):
        a(f"s_lshl_b32 s36, s3, 6")
        a(f"s_add_u32 s36, s36, {512*i}")
        wvoff(2 + i, 36)
    a("""
    v_lshrrev_b32 v10, 2, v0
    v_and_b32 v11, 3, v0
    v_lshrrev_b32 v12, 4, v0
    v_sub_u32 v12, 4, v12
    v_and_b32 v12, 3, v12
    v_xor_b32 v11, v11, v12
    v_lshlrev_b32 v6, 6, v10
    v_lshl_add_u32 v6, v11, 4, v6
    """)
    a("""
    s_mul_i32 s44, s21, 288
    s_lshl_b32 s36, s20, 7                 ; 128*mi
    s_sub_u32 s37, s3, 3                   ; w-3
    s_lshl_b32 s37, s37, 5                 ; 32*(w-3) rows = 16*(2(w-3))
    s_add_u32 s36, s36, s37
    s_sub_u32 s36, s36, 16
    s_max_i32 s38, s36, 0
    s_lshl_b32 s38, s38, 6
    s_add_u32 s39, s36, 16
    s_lshl_b32 s39, s39, 6
    s_cmp_lt_u32 s3, 3
    s_cselect_b32 s28, s24, s12
    s_cselect_b32 s29, s25, s13
    s_cselect_b32 s30, s26, s14
    s_mov_b32 s31, 0x00020000
    s_cselect_b32 s45, s44, s38
    s_cselect_b32 s46, 0x7f000000, s39
    s_mov_b32 s47, 131072
    s_cselect_b32 s47, 110592, s47
    s_lshl_b32 s48, s3, 10
    s_add_u32 s48, s48, 10240
    s_add_u32 s37, s48, 24576
    s_sub_u32 s36, s3, 3
    s_lshl_b32 s36, s36, 11
    s_add_u32 s50, s36, 1024
    s_cmp_lt_u32 s3, 3
    s_cselect_b32 s49, s37, s36
    """)
    a(f"""
    s_cmp_lt_u32 s3, 3
    s_cselect_b32 s51, 1, 0                ; flag w<3
    v_mov_b32 v7, v6
    s_cmp_lt_u32 s3, 3
    s_cbranch_scc0 QK_S3TOK
    v_mov_b32 v7, v5
    """)
    a.label("QK_S3TOK")
    def dma(bufreg):
        a(f"""
        s_add_u32 m0, s{bufreg}, s48
        s_nop 0
        buffer_load_dwordx4 v2, s[24:27], s44 offen lds
        s_add_u32 m0, m0, 8192
        s_nop 0
        buffer_load_dwordx4 v3, s[24:27], s44 offen lds
        s_add_u32 m0, m0, 8192
        s_nop 0
        buffer_load_dwordx4 v4, s[24:27], s44 offen lds
        s_add_u32 m0, s{bufreg}, s49
        s_add_u32 s44, s44, 110592
        buffer_load_dwordx4 v7, s[28:31], s45 offen lds
        s_add_u32 m0, s{bufreg}, s50
        s_cmp_eq_u32 s51, 1
        s_cselect_b32 m0, {4*Q_STAGE}, m0
        s_add_u32 s45, s45, s47
        buffer_load_dwordx4 v6, s[12:15], s46 offen lds
        s_add_u32 s46, s46, 131072
        """)
    for st in range(3):
        a(f"s_mov_b32 s32, {st*Q_STAGE}")
        dma(32)
    a(f"s_mov_b32 s32, {3*Q_STAGE}")
    a("s_mov_b32 s33, 0")
    a("""
    v_and_b32 v10, 15, v0
    v_lshrrev_b32 v11, 2, v10
    v_sub_u32 v11, 4, v11
    v_and_b32 v11, 3, v11
    v_lshrrev_b32 v12, 4, v0               ; g
    v_xor_b32 v11, v11, v12
    s_mul_i32 s36, s22, 80
    v_add_u32 v10, s36, v10
    v_lshlrev_b32 v8, 6, v10
    v_lshl_add_u32 v8, v11, 4, v8
    v_lshrrev_b32 v13, 2, v0
    v_and_b32 v13, 3, v13                  ; r
    v_lshl_add_u32 v13, v12, 2, v13        ; 4g+r
    v_mul_u32_u24 v9, 864, v13
    v_and_b32 v14, 3, v0
    v_lshl_add_u32 v9, v14, 3, v9
    s_mul_i32 s36, s23, 224
    s_add_u32 s36, s36, 10240
    v_add_u32 v9, s36, v9
    """)
    ACC = 100
    for r in range(140):
        a(f"v_mov_b32 v{ACC+r}, 0")
    TB = [16, 36]
    WB = [56 + 4 * j for j in range(7)]
    def rd_tok(buf, tt):
        t = TB[buf] + 4 * tt
        a(f"ds_read_b128 v[{t}:{t+3}], v10 offset:{1024*tt}")
    def rd_w(j, ad):
        w = WB[j]
        a(f"ds_read_b64_tr_b16 v[{w}:{w+1}], v{ad} offset:{32*j}")
        a(f"ds_read_b64_tr_b16 v[{w+2}:{w+3}], v{ad} offset:{32*j+16*864}")
    def mfma(j, buf):
        w = WB[j]
        for tt in range(5):
            acc = ACC + (j * 5 + tt) * 4
            t = TB[buf] + 4 * tt
            a(f"v_mfma_f32_16x16x32_bf16 v[{acc}:{acc+3}], v[{w}:{w+3}], v[{t}:{t+3}], v[{acc}:{acc+3}]")
    a("s_waitcnt vmcnt(10)")
    a("s_barrier")
    a("v_add_u32 v10, s33, v8")
    a("v_add_u32 v12, s33, v9")
    for tt in range(5):
        rd_tok(0, tt)
    for j in range(3):
        rd_w(j, 12)
    a("s_mov_b32 s34, 0")
    a.label("QK_LOOP")
    for half in range(2):
        a("s_waitcnt vmcnt(5)")
        a("s_barrier")
        dma(32)
        a(f"""
        s_add_u32 s32, s32, {Q_STAGE}
        s_cmp_eq_u32 s32, {4*Q_STAGE}
        s_cselect_b32 s32, 0, s32
        s_add_u32 s33, s33, {Q_STAGE}
        s_cmp_eq_u32 s33, {4*Q_STAGE}
        s_cselect_b32 s33, 0, s33
        v_mov_b32 v11, v12
        v_add_u32 v10, s33, v8
        v_add_u32 v12, s33, v9
        """)
        q = [f"W{j}{h}" for j in range(3) for h in "ab"]
        for j in range(7):
            idx = q.index(f"W{j}b")
            remain = len(q) - idx - 1
            a(f"s_waitcnt lgkmcnt({remain})")
            q = q[idx + 1:]
            mfma(j, half)
            if j < 5:
                rd_tok(1 - half, j); q.append(f"T{j}")
            jn = j + 3
            if jn < 7:
                rd_w(jn, 11); q += [f"W{jn}a", f"W{jn}b"]
            else:
                rd_w(jn - 7, 12); q += [f"n{jn-7}a", f"n{jn-7}b"]
            assert len(q) <= 15, len(q)
        assert q[-6:] == [f"n{j}{h}" for j in range(3) for h in "ab"], q
    a("""
    s_add_u32 s34, s34, 1
    s_cmp_lt_u32 s34, 9
    s_cbranch_scc1 QK_LOOP
    """)
    a("""
    s_waitcnt vmcnt(0) lgkmcnt(0)
    s_barrier
    """)
    a(f"""
    v_and_b32 v10, 15, v0
    s_mul_i32 s36, s22, 80
    v_add_u32 v10, s36, v10
    v_mul_u32_u24 v10, {Q_RS}, v10
    v_lshrrev_b32 v11, 4, v0
    v_lshl_add_u32 v10, v11, 3, v10
    s_mul_i32 s36, s23, 224
    v_add_u32 v10, s36, v10
    """)
    for tt in range(5):
        for j in range(7):
            acc = ACC + (j * 5 + tt) * 4
            a(f"v_cvt_pk_bf16_f32 v12, v{acc}, v{acc+1}")
            a(f"v_cvt_pk_bf16_f32 v13, v{acc+2}, v{acc+3}")
            off = 16 * tt * Q_RS + 32 * j
            a(f"ds_write2_b32 v10, v12, v13 offset0:0 offset1:1" if False else f"v_add_u32 v14, {off}, v10")
            a(f"ds_write2_b32 v14, v12, v13 offset0:0 offset1:1")
    a("""
    s_waitcnt lgkmcnt(0)
    s_barrier
    """)
    a(f"""
    s_lshl_b32 s36, s21, 3
    s_add_u32 s36, s36, s3
    s_mul_i32 s36, s36, 18                 ; col0
    s_mul_i32 s37, s3, 36
    """)
    for i in range(9):
        a(f"""
        s_add_u32 s38, s36, {2*i}
        s_lshr_b32 s39, s38, 5
        s_add_u32 s39, s39, 144
        s_lshl_b32 s39, s39, 17
        s_and_b32 s40, s38, 31
        s_lshr_b32 s41, s40, 4                 ; a
        s_lshr_b32 s42, s40, 2
        s_and_b32 s42, s42, 3                  ; g
        s_and_b32 s40, s40, 3                  ; r
        s_lshl_b32 s42, s42, 4
        s_lshl_b32 s41, s41, 3
        s_lshl_b32 s40, s40, 1
        s_add_u32 s39, s39, s42
        s_add_u32 s39, s39, s41
        s_add_u32 s{52+i}, s39, s40
        """)
    a("s_mov_b32 s35, 0x3e715bef              ; scale = 18^-0.5 (f32)")
    a("s_mov_b32 s43, 0x3fb8aa3b              ; log2(e)")
    a("s_mov_b32 s61, 0x05040100")
    a("s_mov_b32 s62, 0x07060302")
    for half in range(2):
        a(f"""
        v_add_u32 v1, {64*half}, v0
        v_add_u32 v2, 16, v1
        v_mul_u32_u24 v2, {Q_RS}, v2
        v_add_u32 v2, s37, v2
        s_lshl_b32 s38, s20, 7
        v_add_u32 v3, s38, v1
        """)
        for i in range(4):
            a(f"ds_read2_b32 v[{16+2*i}:{17+2*i}], v2 offset0:{2*i} offset1:{2*i+1}")
        a("ds_read_b32 v24, v2 offset:32")
        for w in range(8):
            a(f"v_subrev_u32 v4, {2*w*Q_RS - 288}, v2" if 2*w*Q_RS - 288 > 0 else f"v_add_u32 v4, {288 - 2*w*Q_RS}, v2")
            b = 32 + 10 * w
            for i in range(4):
                a(f"ds_read2_b32 v[{b+2*i}:{b+2*i+1}], v4 offset0:{2*i} offset1:{2*i+1}")
            a(f"ds_read_b32 v{b+8}, v4 offset:32")
            if w % 2 == 1:
                a("s_waitcnt lgkmcnt(0)")
        for w in range(8):
            b = 32 + 10 * w
            a(f"v_mov_b32 v{112+w}, 0")
            for i in range(9):
                a(f"v_dot2_f32_bf16 v{112+w}, v{16+i}, v{b+i}, v{112+w}")
        for w in range(8):
            off = 576 - 2 * w * Q_RS
            a(f"v_subrev_u32 v4, {-off}, v2" if off < 0 else f"v_add_u32 v4, {off}, v2")
            b = 32 + 10 * w
            for i in range(4):
                a(f"ds_read2_b32 v[{b+2*i}:{b+2*i+1}], v4 offset0:{2*i} offset1:{2*i+1}")
            a(f"ds_read_b32 v{b+8}, v4 offset:32")
            if w % 2 == 1:
                a("s_waitcnt lgkmcnt(0)")
        a("v_mov_b32 v5, 0xce6e0000")
        for w in range(0, 8, 2):
            a(f"""
            v_cvt_pk_bf16_f32 v6, v{112+w}, v{113+w}
            v_lshlrev_b32 v{112+w}, 16, v6
            v_and_b32 v{113+w}, 0xffff0000, v6
            v_mul_f32 v{112+w}, s35, v{112+w}
            v_mul_f32 v{113+w}, s35, v{113+w}
            v_cvt_pk_bf16_f32 v6, v{112+w}, v{113+w}
            v_lshlrev_b32 v{112+w}, 16, v6
            v_and_b32 v{113+w}, 0xffff0000, v6
            """)
        for w in range(1, 8):
            a(f"""
            v_cmp_gt_u32 vcc, {2*w}, v3
            s_nop 1
            v_cndmask_b32 v{112+w}, v{112+w}, v5, vcc
            """)
        a("""
        v_max3_f32 v6, v112, v113, v114
        v_max3_f32 v6, v6, v115, v116
        v_max3_f32 v6, v6, v117, v118
        v_max_f32 v6, v6, v119
        """)
        for w in range(8):
            a(f"v_sub_f32 v{112+w}, v{112+w}, v6")
            a(f"v_mul_f32 v{112+w}, s43, v{112+w}")
            a(f"v_exp_f32 v{112+w}, v{112+w}")
        a("""
        s_nop 0
        v_add_f32 v6, v112, v113
        v_add_f32 v7, v114, v115
        v_add_f32 v8, v116, v117
        v_add_f32 v9, v118, v119
        v_add_f32 v6, v6, v7
        v_add_f32 v8, v8, v9
        v_add_f32 v6, v6, v8
        v_rcp_f32 v6, v6
        s_nop 0
        """)
        for w in range(8):
            a(f"v_mul_f32 v{112+w}, v{112+w}, v6")
        for p in range(4):
            a(f"v_cvt_pk_bf16_f32 v{120+p}, v{112+2*p}, v{113+2*p}")
        for d in range(18):
            a(f"v_mov_b32 v{124+d}, 0")
        for p in range(4):
            b0 = 32 + 10 * (2 * p)
            b1 = 32 + 10 * (2 * p + 1)
            for i in range(9):
                a(f"""
                v_perm_b32 v6, v{b1+i}, v{b0+i}, s61
                v_perm_b32 v7, v{b1+i}, v{b0+i}, s62
                v_dot2_f32_bf16 v{124+2*i}, v6, v{120+p}, v{124+2*i}
                v_dot2_f32_bf16 v{125+2*i}, v7, v{120+p}, v{125+2*i}
                """)
        a("v_lshlrev_b32 v4, 6, v3")
        for i in range(9):
            a(f"v_cvt_pk_bf16_f32 v{142+i}, v{124+2*i}, v{125+2*i}")
            a(f"buffer_store_dword v{142+i}, v4, s[16:19], s{52+i} offen")
    a("s_endpgm")

W_REG = 9216
def gen_g2(a):
    kernel_header(a, "g2_kernel")
    a("""
    s_cmp_ge_u32 s2, 256
    s_cbranch_scc1 G2_END
    s_load_dwordx2 s[4:5], s[0:1], 72      ; ws
    s_load_dwordx2 s[6:7], s[0:1], 48      ; W_down
    s_load_dwordx2 s[8:9], s[0:1], 16      ; wo
    s_load_dwordx2 s[10:11], s[0:1], 0     ; x
    s_load_dwordx2 s[40:41], s[0:1], 56    ; out
    v_lshrrev_b32 v1, 6, v0
    v_and_b32 v0, 63, v0
    s_nop 0
    v_readfirstlane_b32 s3, v1             ; wave
    s_and_b32 s20, s2, 7
    s_lshl_b32 s20, s20, 2
    s_lshr_b32 s21, s2, 3
    s_and_b32 s22, s21, 3
    s_add_u32 s20, s20, s22                ; mi = 4x + (q&3)
    s_lshr_b32 s21, s21, 2                 ; ni
    s_waitcnt lgkmcnt(0)
    """)
    srd(a, 16, 4, HC_BYTES, HC_OFF)
    srd(a, 24, 6, 4608 * 1152)
    srd(a, 28, 8, 576 * 1152)
    srd(a, 44, 10, 2048 * 1152)
    srd(a, 48, 40, 2048 * 1152)
    a("""
    v_lshrrev_b32 v10, 2, v0
    v_and_b32 v11, 3, v0
    v_lshrrev_b32 v12, 4, v0
    v_sub_u32 v12, 4, v12
    v_and_b32 v12, 3, v12
    v_xor_b32 v11, v11, v12
    v_lshlrev_b32 v2, 6, v10
    v_lshl_add_u32 v2, v11, 4, v2
    s_lshl_b32 s52, s3, 17
    s_lshl_b32 s36, s20, 12                ; 64*mi*64
    s_add_u32 s52, s52, s36
    s_mul_i32 s53, s3, 36864               ; 32w rows * 1152
    s_mul_i32 s36, s21, 144
    s_add_u32 s53, s53, s36
    s_mul_i32 s54, s3, 9216
    """)
    for n in range(5):
        a(f"""
        v_add_u32 v10, {64*n}, v0
        v_mul_u32_u24 v11, 7282, v10
        v_lshrrev_b32 v11, 16, v11             ; kk = P/9
        v_mul_u32_u24 v12, 9, v11
        v_sub_u32 v12, v10, v12
        v_mul_u32_u24 v11, 1152, v11
        v_lshl_add_u32 v{3+n}, v12, 4, v11
        """)
        if 0 < n < 4:
            a(f"v_subrev_u32 v{3+n}, {1024*n}, v{3+n}")
    a("""
    v_mov_b32 v10, 0x7f000000
    v_cmp_gt_u32 vcc, 32, v0
    s_nop 1
    v_cndmask_b32 v7, v10, v7, vcc
    """)
    def dma(bufreg):
        a(f"""
        s_mov_b32 m0, s{bufreg}
        s_nop 0
        buffer_load_dwordx4 v2, s[16:19], s52 offen lds
        buffer_load_dwordx4 v2, s[16:19], s52 offen offset:1024 lds
        buffer_load_dwordx4 v2, s[16:19], s52 offen offset:2048 lds
        buffer_load_dwordx4 v2, s[16:19], s52 offen offset:3072 lds
        s_add_u32 m0, s{bufreg}, 4096
        s_add_u32 s52, s52, {4*KBS}
        buffer_load_dwordx4 v3, s[24:27], s53 offen lds
        buffer_load_dwordx4 v4, s[24:27], s53 offen offset:1024 lds
        buffer_load_dwordx4 v5, s[24:27], s53 offen offset:2048 lds
        buffer_load_dwordx4 v6, s[24:27], s53 offen offset:3072 lds
        s_add_u32 m0, s{bufreg}, 8192
        s_nop 0
        buffer_load_dwordx4 v7, s[24:27], s53 offen lds
        s_add_u32 s53, s53, {128*1152}
        """)
    SET = 4 * W_REG
    for st in range(3):
        a(f"s_add_u32 s32, s54, {st*SET}")
        dma(32)
    a(f"s_add_u32 s32, s54, {3*SET}")
    a("s_mov_b32 s33, s54")
    a(f"s_add_u32 s55, s54, {4*SET}")
    a("""
    v_and_b32 v10, 15, v0
    v_lshrrev_b32 v11, 2, v10
    v_sub_u32 v11, 4, v11
    v_and_b32 v11, 3, v11
    v_lshrrev_b32 v12, 4, v0
    v_xor_b32 v11, v11, v12
    v_lshlrev_b32 v8, 6, v10
    v_lshl_add_u32 v8, v11, 4, v8
    v_lshrrev_b32 v13, 2, v0
    v_and_b32 v13, 3, v13
    v_lshl_add_u32 v13, v12, 2, v13
    v_mul_u32_u24 v9, 144, v13
    v_and_b32 v14, 3, v0
    v_lshl_add_u32 v9, v14, 3, v9
    v_add_u32 v9, 4096, v9
    """)
    ACC = 64
    for r in range(80):
        a(f"v_mov_b32 v{ACC+r}, 0")
    T = [16 + 4 * t for t in range(4)]
    W = [32 + 4 * j for j in range(5)]
    a("s_mov_b32 s34, 0")
    a.label("G2_LOOP")
    a("""
    s_waitcnt vmcnt(18)
    v_add_u32 v10, s33, v8
    v_add_u32 v11, s33, v9
    """)
    for tt in range(4):
        a(f"ds_read_b128 v[{T[tt]}:{T[tt]+3}], v10 offset:{1024*tt}")
    for j in range(5):
        a(f"ds_read_b64_tr_b16 v[{W[j]}:{W[j]+1}], v11 offset:{32*j}")
        a(f"ds_read_b64_tr_b16 v[{W[j]+2}:{W[j]+3}], v11 offset:{32*j+2304}")
    a("""
    s_cmp_lg_u32 s34, 33
    s_cbranch_scc1 G2_NOSW
    s_mov_b32 s24, s28
    s_mov_b32 s25, s29
    s_mov_b32 s26, s30
    s_mul_i32 s53, s3, 36864
    s_mul_i32 s36, s21, 144
    s_add_u32 s53, s53, s36
    """)
    a.label("G2_NOSW")
    dma(32)
    a(f"""
    s_add_u32 s32, s32, {SET}
    s_cmp_eq_u32 s32, s55
    s_cselect_b32 s32, s54, s32
    s_add_u32 s33, s33, {SET}
    s_cmp_eq_u32 s33, s55
    s_cselect_b32 s33, s54, s33
    """)
    for j in range(5):
        a(f"s_waitcnt lgkmcnt({2*(4-j)})")
        for tt in range(4):
            acc = ACC + (j * 4 + tt) * 4
            a(f"v_mfma_f32_16x16x32_bf16 v[{acc}:{acc+3}], v[{W[j]}:{W[j]+3}], v[{T[tt]}:{T[tt]+3}], v[{acc}:{acc+3}]")
    a("""
    s_add_u32 s34, s34, 1
    s_cmp_lt_u32 s34, 41
    s_cbranch_scc1 G2_LOOP
    s_waitcnt vmcnt(0)
    s_barrier
    """)
    a("""
    s_mul_i32 s36, s3, 20480
    v_lshlrev_b32 v10, 4, v0
    v_add_u32 v10, s36, v10
    s_nop 7
    """)
    for tile in range(20):
        acc = ACC + tile * 4
        a(f"ds_write_b128 v10, v[{acc}:{acc+3}] offset:{tile*1024}")
    a("""
    v_and_b32 v11, 15, v0
    s_lshl_b32 s36, s20, 6
    s_lshl_b32 s37, s3, 4
    s_add_u32 s36, s36, s37
    v_add_u32 v11, s36, v11
    v_mul_u32_u24 v11, 1152, v11
    v_lshrrev_b32 v12, 4, v0
    v_lshl_add_u32 v11, v12, 3, v11
    s_mul_i32 s36, s21, 144
    v_add_u32 v11, s36, v11
    v_add_u32 v13, 128, v11
    v_mov_b32 v14, 0x7f000000
    v_cmp_gt_u32 vcc, 32, v0
    s_nop 1
    v_cndmask_b32 v13, v14, v13, vcc
    """)
    for j in range(4):
        a(f"buffer_load_dwordx2 v[{16+2*j}:{17+2*j}], v11, s[44:47], 0 offen offset:{32*j}")
    a("buffer_load_dwordx2 v[24:25], v13, s[44:47], 0 offen")
    a("""
    s_waitcnt lgkmcnt(0)
    s_barrier
    s_lshl_b32 s36, s3, 10
    v_lshlrev_b32 v10, 4, v0
    v_add_u32 v10, s36, v10
    """)
    a("v_add_u32 v15, 40960, v10")
    for j in range(5):
        for s in range(4):
            r = 64 + (j * 4 + s) * 4
            ad = 10 if s < 2 else 15
            a(f"ds_read_b128 v[{r}:{r+3}], v{ad} offset:{(s&1)*20480 + j*4096}")
    a("s_waitcnt vmcnt(0) lgkmcnt(0)")
    for j in range(5):
        r = 64 + j * 16
        for e in range(4):
            a(f"v_add_f32 v{r+e}, v{r+e}, v{r+4+e}")
            a(f"v_add_f32 v{r+8+e}, v{r+8+e}, v{r+12+e}")
            a(f"v_add_f32 v{r+e}, v{r+e}, v{r+8+e}")
        x = 16 + 2 * j
        a(f"""
        v_lshlrev_b32 v30, 16, v{x}
        v_and_b32 v31, 0xffff0000, v{x}
        v_lshlrev_b32 v32, 16, v{x+1}
        v_and_b32 v33, 0xffff0000, v{x+1}
        v_add_f32 v{r}, v{r}, v30
        v_add_f32 v{r+1}, v{r+1}, v31
        v_add_f32 v{r+2}, v{r+2}, v32
        v_add_f32 v{r+3}, v{r+3}, v33
        v_cvt_pk_bf16_f32 v{34+2*j}, v{r}, v{r+1}
        v_cvt_pk_bf16_f32 v{35+2*j}, v{r+2}, v{r+3}
        """)
        if j < 4:
            a(f"buffer_store_dwordx2 v[{34+2*j}:{35+2*j}], v11, s[48:51], 0 offen offset:{32*j}")
        else:
            a(f"buffer_store_dwordx2 v[{34+2*j}:{35+2*j}], v13, s[48:51], 0 offen")
    a.label("G2_END")
    a("s_endpgm")

def main(path):
    a = A()
    hdr = open("cdna_kernels/" + NAME + ".s.ref").read().split("; Override launch")[0]
    out = hdr
    out += "; @launch kernel=ln_kernel grid=(256,1,1) block=(64,1,1) lds=0\n"
    out += "; @launch kernel=g1_kernel grid=(256,1,1) block=(512,1,1) lds=163840\n"
    out += "; @launch kernel=g2_kernel grid=(256,1,1) block=(256,1,1) lds=147456\n"
    out += '.amdgcn_target "amdgcn-amd-amdhsa--gfx950"\n.text\n'
    gen_ln(a)
    gen_g1(a)
    gen_g2(a)
    out += a.text()
    out += '.section .rodata,"a"\n.p2align 6\n'
    out += kd("ln_kernel", 136)
    out += ".p2align 6\n" + kd("g1_kernel", 256)
    out += ".p2align 6\n" + kd("g2_kernel", 144)
    open(path, "w").write(out)

if __name__ == "__main__":
    main(sys.argv[1] if len(sys.argv) > 1 else "cdna_kernels/" + NAME + ".s")
```

```python
import sys

NAME = "parallel_sum__sliding_local_dilated__glu_gated_reglu__prompt"

XN_OFF = 0
XN_BYTES = 18 * 2048 * 64
HC_OFF = 0x400000
HC_BYTES = 162 * 2048 * 64
W2P_OFF = 0x2000000
W2P_NI = 162 * 4608
WQP_OFF = 0x3000000
WQP_HG = 576 * 864
KBS = 2048 * 64

class A:
    def __init__(self):
        self.l = []
    def __call__(self, s):
        for line in s.strip("\n").split("\n"):
            self.l.append("    " + line.strip())
    def label(self, s):
        self.l.append(s + ":")
    def raw(self, s):
        self.l.append(s)
    def text(self):
        return "\n".join(self.l) + "\n"

def srd(a, d, base, nbytes, off=0):
    if off:
        a(f"s_add_u32 s{d}, s{base}, {hex(off)}")
        a(f"s_addc_u32 s{d+1}, s{base+1}, 0")
    else:
        a(f"s_mov_b32 s{d}, s{base}")
        a(f"s_mov_b32 s{d+1}, s{base+1}")
    a(f"s_mov_b32 s{d+2}, {hex(nbytes)}")
    a(f"s_mov_b32 s{d+3}, 0x00020000")

import os
STAMP = bool(os.environ.get("STAMP"))
def stamp(a, i):
    if STAMP:
        a(f"s_memtime s[{70+2*i}:{71+2*i}]")
def stamp_dump(a, n, wsreg=4):
    if not STAMP: return
    a("s_waitcnt lgkmcnt(0)")
    a(f"s_add_u32 s96, s{wsreg}, 0x8000000")
    a(f"s_addc_u32 s97, s{wsreg+1}, 0")
    a("s_mov_b32 s98, 0x1000000")
    a("s_mov_b32 s99, 0x00020000")
    a("s_lshl_b32 s94, s2, 4")
    a("s_add_u32 s94, s94, s3")
    a("s_lshl_b32 s94, s94, 6")
    a("v_mov_b32 v1, 0")
    for i in range(n):
        a(f"v_mov_b32 v2, s{70+2*i}")
        a(f"buffer_store_dword v2, v1, s[96:99], s94 offen offset:{4*i}")

def kernel_header(a, name):
    a.raw(f".globl {name}")
    a.raw(".p2align 8")
    a.raw(f".type {name},@function")
    a.label(name)

def kd(name, vgpr, sgpr=102):
    acc = (vgpr + 3) // 4 * 4
    return f""".amdhsa_kernel {name}
  .amdhsa_next_free_vgpr {vgpr}
  .amdhsa_next_free_sgpr {sgpr}
  .amdhsa_accum_offset {acc}
  .amdhsa_group_segment_fixed_size 0
  .amdhsa_kernarg_size 80
  .amdhsa_user_sgpr_count 2
  .amdhsa_user_sgpr_kernarg_segment_ptr 1
  .amdhsa_system_sgpr_workgroup_id_x 1
.end_amdhsa_kernel
"""

def gen_ln(a):
    kernel_header(a, "ln_kernel")
    a("""
    s_cmp_ge_u32 s2, 256
    s_cbranch_scc1 RP_ROLE
    s_load_dwordx2 s[4:5], s[0:1], 0
    s_load_dwordx2 s[6:7], s[0:1], 72
    v_lshrrev_b32 v1, 3, v0
    v_and_b32 v2, 7, v0                ; j
    s_lshl_b32 s3, s2, 3
    v_add_u32 v1, s3, v1               ; row
    v_lshrrev_b32 v3, 2, v2            ; j>>2
    v_and_b32 v4, 3, v2                ; g
    s_movk_i32 s16, 1152
    v_mul_lo_u32 v5, v1, s16
    v_lshl_add_u32 v5, v3, 6, v5
    v_lshl_add_u32 v5, v4, 3, v5
    v_lshlrev_b32 v6, 6, v1
    v_lshl_add_u32 v6, v4, 4, v6
    v_lshl_add_u32 v6, v3, 17, v6
    s_waitcnt lgkmcnt(0)
    """)
    srd(a, 8, 4, 2048 * 1152)
    srd(a, 12, 6, XN_BYTES, XN_OFF)
    for i in range(9):
        a(f"buffer_load_dwordx2 v[{8+4*i}:{9+4*i}], v5, s[8:11], 0 offen offset:{128*i}")
        a(f"buffer_load_dwordx2 v[{10+4*i}:{11+4*i}], v5, s[8:11], 0 offen offset:{128*i+32}")
    a("v_mov_b32 v50, 0")
    a("v_mov_b32 v51, 0")
    for i in range(9):
        a(f"s_waitcnt vmcnt({2*(8-i)})")
        for d in range(4):
            src = 8 + 4 * i + d
            lo = 64 + 8 * i + 2 * d
            a(f"v_lshlrev_b32 v{lo}, 16, v{src}")
            a(f"v_and_b32 v{lo+1}, 0xffff0000, v{src}")
            a(f"v_add_f32 v50, v50, v{lo}")
            a(f"v_add_f32 v51, v51, v{lo+1}")
    a("v_add_f32 v50, v50, v51")
    def red8(r):
        a(f"""
        s_nop 1
        v_add_f32_dpp v{r}, v{r}, v{r} quad_perm:[1,0,3,2] row_mask:0xf bank_mask:0xf
        s_nop 1
        v_add_f32_dpp v{r}, v{r}, v{r} quad_perm:[2,3,0,1] row_mask:0xf bank_mask:0xf
        s_nop 1
        v_add_f32_dpp v{r}, v{r}, v{r} row_half_mirror row_mask:0xf bank_mask:0xf
        """)
    red8(50)
    a("v_mul_f32 v50, 0x3ae38e39, v50     ; /576 -> mean (f32)")
    a("v_mov_b32 v52, 0")
    a("v_mov_b32 v53, 0")
    for e in range(0, 72, 2):
        a(f"v_sub_f32 v54, v{64+e}, v50")
        a(f"v_sub_f32 v55, v{65+e}, v50")
        a(f"v_fmac_f32 v52, v54, v54")
        a(f"v_fmac_f32 v53, v55, v55")
    a("v_add_f32 v52, v52, v53")
    red8(52)
    a("""
    v_mul_f32 v52, 0x3ae38e39, v52     ; var f32
    v_cvt_pk_bf16_f32 v54, v50, v52
    v_lshlrev_b32 v50, 16, v54         ; mean_b
    v_and_b32 v52, 0xffff0000, v54     ; var_b
    v_add_f32 v52, 0x3727c5ac, v52     ; + 1e-5
    v_cvt_pk_bf16_f32 v54, v52, v52
    v_lshlrev_b32 v52, 16, v54
    v_sqrt_f32 v52, v52
    s_nop 0
    v_cvt_pk_bf16_f32 v54, v52, v52
    v_lshlrev_b32 v52, 16, v54
    v_rcp_f32 v53, v52                 ; rinv
    s_nop 0
    """)
    for i in range(9):
        for d in range(4):
            lo = 64 + 8 * i + 2 * d
            dst = 8 + 4 * i + d
            a(f"""
            v_sub_f32 v54, v{lo}, v50
            v_sub_f32 v55, v{lo+1}, v50
            v_cvt_pk_bf16_f32 v56, v54, v55
            v_lshlrev_b32 v54, 16, v56
            v_and_b32 v55, 0xffff0000, v56
            v_mul_f32 v56, v54, v53
            v_mul_f32 v57, v55, v53
            v_fma_f32 v58, -v56, v52, v54
            v_fma_f32 v59, -v57, v52, v55
            v_fmac_f32 v56, v58, v53
            v_fmac_f32 v57, v59, v53
            v_cvt_pk_bf16_f32 v{dst}, v56, v57
            """)
        a(f"s_mov_b32 s17, {2*KBS*i}")
        a(f"buffer_store_dwordx4 v[{8+4*i}:{11+4*i}], v6, s[12:15], s17 offen")
    a.label("LN_END")
    a("s_endpgm")
    a.label("RP_ROLE")
    a("""
    s_cmp_ge_u32 s2, 976
    s_cbranch_scc1 LN_END
    s_load_dwordx2 s[4:5], s[0:1], 72      ; ws
    s_load_dwordx2 s[6:7], s[0:1], 48      ; W_down
    s_load_dwordx2 s[8:9], s[0:1], 16      ; wo
    s_load_dwordx2 s[10:11], s[0:1], 8     ; wqkv
    s_cmp_ge_u32 s2, 904
    s_cbranch_scc1 RPQ_ROLE
    s_sub_u32 s20, s2, 256
    s_lshl_b32 s20, s20, 3
    s_waitcnt lgkmcnt(0)
    s_sub_u32 s21, s20, 4608
    s_cmp_ge_u32 s20, 4608
    s_cselect_b32 s12, s8, s6
    s_cselect_b32 s13, s9, s7
    s_mov_b32 s14, 5308416
    s_mov_b32 s15, 0x00020000
    s_cselect_b32 s21, s21, s20
    s_mul_i32 s21, s21, 1152
    """)
    srd(a, 16, 4, 8 * W2P_NI, W2P_OFF)
    a("""
    s_lshr_b32 s22, s20, 5
    s_mul_i32 s22, s22, 4608
    s_and_b32 s23, s20, 31
    v_lshlrev_b32 v1, 4, v0
    """)
    for i in range(9):
        a(f"buffer_load_dwordx4 v[{8+4*i}:{11+4*i}], v1, s[12:15], s21 offen offset:{(1024*i)%4096}")
        if i % 4 == 3:
            a("s_add_u32 s21, s21, 4096")
    for i in range(9):
        a(f"""
        v_add_u32 v2, {64*i}, v0
        v_mul_u32_u24 v3, 911, v2
        v_lshrrev_b32 v3, 16, v3               ; row = P/72
        v_mul_u32_u24 v4, 72, v3
        v_sub_u32 v4, v2, v4                   ; u
        v_mul_u32_u24 v5, 7282, v4
        v_lshrrev_b32 v5, 16, v5               ; ni
        v_mul_u32_u24 v6, 9, v5
        v_sub_u32 v6, v4, v6                   ; c
        v_add_u32 v3, s23, v3                  ; r
        v_lshrrev_b32 v7, 1, v6
        v_lshlrev_b32 v7, 10, v7
        v_lshl_add_u32 v7, v3, 5, v7
        v_and_b32 v50, 1, v6
        v_lshl_add_u32 v7, v50, 4, v7          ; c<8 form
        v_lshlrev_b32 v50, 4, v3
        v_add_u32 v50, 4096, v50               ; c==8 form
        v_cmp_eq_u32 vcc, 8, v6
        s_mov_b32 s24, {W2P_NI}
        v_mul_lo_u32 v5, v5, s24
        v_cndmask_b32 v7, v7, v50, vcc
        v_add_u32 v7, v7, v5
        s_waitcnt vmcnt(8)
        buffer_store_dwordx4 v[{8+4*i}:{11+4*i}], v7, s[16:19], s22 offen
        """)
    a("s_endpgm")
    a.label("RPQ_ROLE")
    a("""
    s_sub_u32 s20, s2, 904                 ; 0..71 : rows 8*s20..
    s_lshl_b32 s20, s20, 3
    s_waitcnt lgkmcnt(0)
    """)
    srd(a, 12, 10, 576 * 3456)
    srd(a, 16, 4, 4 * WQP_HG, WQP_OFF)
    a("""
    s_mul_i32 s21, s20, 3456
    s_mul_i32 s22, s20, 864
    v_lshlrev_b32 v1, 4, v0
    """)
    for i in range(27):
        a(f"buffer_load_dwordx4 v[{8+4*i}:{11+4*i}], v1, s[12:15], s21 offen offset:{(1024*i)%4096}")
        if i % 4 == 3:
            a("s_add_u32 s21, s21, 4096")
    for i in range(27):
        a(f"""
        v_add_u32 v2, {64*i}, v0
        v_mul_u32_u24 v3, 1214, v2
        v_lshrrev_b32 v3, 18, v3               ; row = P/216
        v_mul_u32_u24 v4, 216, v3
        v_sub_u32 v4, v2, v4                   ; u
        v_mul_u32_u24 v5, 911, v4
        v_lshrrev_b32 v5, 16, v5               ; seg
        v_mul_u32_u24 v6, 72, v5
        v_sub_u32 v6, v4, v6                   ; w
        v_mul_u32_u24 v7, 3641, v6
        v_lshrrev_b32 v7, 16, v7               ; hg
        v_mul_u32_u24 v120, 18, v7
        v_sub_u32 v6, v6, v120                 ; c
        v_mul_u32_u24 v5, 18, v5
        v_add_u32 v6, v6, v5
        v_mul_u32_u24 v3, 864, v3
        v_lshl_add_u32 v3, v6, 4, v3
        s_mov_b32 s24, {WQP_HG}
        v_mul_lo_u32 v7, v7, s24
        v_add_u32 v3, v3, v7
        s_waitcnt vmcnt(26)
        buffer_store_dwordx4 v[{8+4*i}:{11+4*i}], v3, s[16:19], s22 offen
        """)
    a("s_endpgm")

G_STAGE = 40960
Q_STAGE = 37888
Q_RS = 1000

def gen_g1(a):
    kernel_header(a, "g1_kernel")
    a("""
    s_cmp_ge_u32 s2, 256
    s_cbranch_scc1 G1_END
    s_load_dwordx2 s[4:5], s[0:1], 72      ; ws
    s_load_dwordx2 s[6:7], s[0:1], 32      ; W_gate
    s_load_dwordx2 s[8:9], s[0:1], 40      ; W_up
    s_load_dwordx2 s[10:11], s[0:1], 8     ; wqkv
    v_lshrrev_b32 v1, 6, v0
    v_and_b32 v0, 63, v0                   ; lane
    s_nop 0
    v_readfirstlane_b32 s3, v1
    s_waitcnt lgkmcnt(0)
    """)
    srd(a, 12, 4, XN_BYTES, XN_OFF)
    srd(a, 16, 4, HC_BYTES, HC_OFF)
    a("""
    s_cmp_ge_u32 s2, 192
    s_cbranch_scc1 QKV_ROLE
    """)
    import os
    if os.environ.get("SKIP_GU"): a("s_endpgm")
    gen_g1_gateup(a)
    a.label("QKV_ROLE")
    if os.environ.get("SKIP_QKV"): a("s_endpgm")
    gen_g1_qkv(a)
    a.label("G1_END")
    a("s_endpgm")

def gen_g1_gateup(a):
    a("""
    s_lshr_b32 s20, s2, 3
    s_and_b32 s20, s20, 7                  ; mi
    s_and_b32 s21, s2, 7
    s_mul_i32 s21, s21, 3
    s_lshr_b32 s22, s2, 6
    s_add_u32 s21, s21, s22                ; fi
    s_lshr_b32 s22, s3, 1                  ; tw = w>>1  (0..3)
    s_and_b32 s23, s3, 1                   ; fw = w&1
    """)
    a("""
    s_cmp_ge_u32 s3, 4
    s_cselect_b32 s24, s8, s6
    s_cselect_b32 s25, s9, s7
    s_mov_b32 s26, 5308416
    s_mov_b32 s27, 0x00020000
    """)
    a("""
    s_lshl_b32 s28, s20, 14                ; 256*mi*64
    s_lshl_b32 s36, s3, 11                 ; 2w*16 rows*64B = w*2048
    s_add_u32 s28, s28, s36
    s_mov_b32 s30, s36
    s_and_b32 s36, s3, 3                   ; a
    s_mul_i32 s29, s36, 73728              ; 8a*9216
    s_mul_i32 s37, s21, 384
    s_add_u32 s29, s29, s37
    s_mul_i32 s31, s36, 3072
    s_lshr_b32 s37, s3, 2
    s_mul_i32 s37, s37, 12288
    s_add_u32 s31, s31, s37
    s_add_u32 s31, s31, 16384
    """)
    a("""
    v_lshrrev_b32 v10, 2, v0
    v_and_b32 v11, 3, v0
    v_lshrrev_b32 v12, 4, v0
    v_xor_b32 v11, v11, v12
    v_lshlrev_b32 v2, 6, v10
    v_lshl_add_u32 v2, v11, 4, v2
    """)
    for b in range(3):
        a(f"""
        v_add_u32 v10, {64*b}, v0
        v_mul_u32_u24 v11, 2731, v10
        v_lshrrev_b32 v11, 16, v11             ; k = P/24
        v_mul_u32_u24 v12, 24, v11
        v_sub_u32 v12, v10, v12                ; u'
        v_lshrrev_b32 v13, 1, v11
        v_and_b32 v13, 1, v13
        v_lshlrev_b32 v13, 2, v13
        v_xor_b32 v12, v12, v13                ; u
        v_mul_u32_u24 v11, 9216, v11
        v_lshl_add_u32 v{3+b}, v12, 4, v11
        """)
        if b:
            a(f"v_subrev_u32 v{3+b}, {1024*b}, v{3+b}")
    a("""
    v_and_b32 v10, 31, v0
    s_lshl_b32 s36, s22, 6
    v_add_u32 v10, s36, v10
    v_lshrrev_b32 v11, 5, v0               ; hh
    v_lshrrev_b32 v12, 2, v0
    v_and_b32 v12, 3, v12                  ; r == (l>>2)&3
    v_xor_b32 v13, v11, v12
    v_lshlrev_b32 v6, 6, v10
    v_lshl_add_u32 v6, v13, 4, v6
    v_xor_b32 v7, 32, v6
    """)
    a("""
    v_lshrrev_b32 v13, 4, v0
    v_and_b32 v13, 1, v13
    v_and_b32 v14, 3, v0
    v_lshl_add_u32 v13, v13, 2, v14        ; c
    v_and_b32 v14, 1, v13                  ; hho
    v_lshrrev_b32 v15, 1, v13              ; q
    v_lshrrev_b32 v16, 1, v15              ; q>>1
    v_and_b32 v15, 1, v15                  ; q&1
    v_lshl_add_u32 v14, v14, 1, v16
    v_lshl_add_u32 v14, v15, 2, v14        ; e
    v_lshl_add_u32 v15, v11, 2, v12        ; 4hh + r
    v_mul_u32_u24 v15, 384, v15
    v_lshl_add_u32 v15, v14, 3, v15
    s_mul_i32 s36, s23, 192
    s_add_u32 s36, s36, 16384
    v_add_u32 v15, s36, v15                ; const
    v_lshrrev_b32 v16, 1, v12              ; b
    v_lshlrev_b32 v16, 6, v16              ; 64b
    s_cmp_eq_u32 s23, 0
    s_cselect_b32 s36, 1, -1
    v_mul_lo_u32 v16, v16, s36
    v_add_u32 v8, v15, v16
    v_sub_u32 v9, v15, v16
    """)
    def dma(bufreg):
        a(f"""
        s_add_u32 m0, s{bufreg}, s30
        s_nop 0
        buffer_load_dwordx4 v2, s[12:15], s28 offen lds
        buffer_load_dwordx4 v2, s[12:15], s28 offen offset:1024 lds
        s_add_u32 m0, s{bufreg}, s31
        s_add_u32 s28, s28, {KBS}
        buffer_load_dwordx4 v3, s[24:27], s29 offen lds
        buffer_load_dwordx4 v4, s[24:27], s29 offen offset:1024 lds
        buffer_load_dwordx4 v5, s[24:27], s29 offen offset:2048 lds
        s_add_u32 s29, s29, {32*9216}
        """)
    stamp(a, 0)
    for st in range(3):
        a(f"s_mov_b32 s32, {st*G_STAGE}")
        dma(32)
    a(f"s_mov_b32 s32, {3*G_STAGE}")
    a("s_mov_b32 s33, 0")
    ACC = 64
    for r in range(192):
        a(f"v_mov_b32 v{ACC+r}, 0")
    TB = [40, 48]
    WB = [16, 20, 24, 28, 32, 36]
    def set_addrs():
        a("""
        v_add_u32 v10, s33, v6
        v_add_u32 v11, s33, v7
        v_add_u32 v12, s33, v8
        v_add_u32 v13, s33, v9
        """)
    def rd_tok(buf, ks):
        ad = 10 + ks
        a(f"ds_read_b128 v[{TB[buf]}:{TB[buf]+3}], v{ad}")
        a(f"ds_read_b128 v[{TB[buf]+4}:{TB[buf]+7}], v{ad} offset:2048")
    def rd_w(j, ks):
        jj = j % 3
        mat = j // 3
        ad = 12 + (jj & 1)
        off = 64 * jj + 3072 * ks + 12288 * mat
        w = WB[j]
        a(f"ds_read_b64_tr_b16 v[{w}:{w+1}], v{ad} offset:{off}")
        a(f"ds_read_b64_tr_b16 v[{w+2}:{w+3}], v{ad} offset:{off+6144}")
    def mfma(j, buf):
        w = WB[j]
        for tt in range(2):
            acc = ACC + (j * 2 + tt) * 16
            t = TB[buf] + 4 * tt
            a(f"v_mfma_f32_32x32x16_bf16 v[{acc}:{acc+15}], v[{w}:{w+3}], v[{t}:{t+3}], v[{acc}:{acc+15}]")
    stamp(a, 1)
    a("s_waitcnt vmcnt(10)")
    a("s_barrier")
    stamp(a, 2)
    set_addrs()
    rd_tok(0, 0)
    for j in range(6):
        rd_w(j, 0)
    a("s_mov_b32 s34, 0")
    a.label("GU_LOOP")
    rd_tok(1, 1)
    for j in range(6):
        a("s_waitcnt lgkmcnt(12)")
        mfma(j, 0)
        rd_w(j, 1)
    a("s_waitcnt vmcnt(5)")
    a("s_barrier")
    dma(32)
    a(f"""
    s_add_u32 s32, s32, {G_STAGE}
    s_cmp_eq_u32 s32, {4*G_STAGE}
    s_cselect_b32 s32, 0, s32
    s_add_u32 s33, s33, {G_STAGE}
    s_cmp_eq_u32 s33, {4*G_STAGE}
    s_cselect_b32 s33, 0, s33
    """)
    set_addrs()
    rd_tok(0, 0)
    for j in range(6):
        a("s_waitcnt lgkmcnt(12)")
        mfma(j, 1)
        rd_w(j, 0)
    a("""
    s_add_u32 s34, s34, 1
    s_cmp_lt_u32 s34, 18
    s_cbranch_scc1 GU_LOOP
    """)
    a("""
    s_waitcnt lgkmcnt(0)
    s_nop 15
    """)
    stamp(a, 3)
    a("""
    v_and_b32 v10, 31, v0
    s_lshl_b32 s36, s20, 8
    s_lshl_b32 s37, s22, 6
    s_add_u32 s36, s36, s37
    v_add_u32 v10, s36, v10
    v_lshlrev_b32 v10, 6, v10
    v_lshrrev_b32 v11, 5, v0
    v_lshl_add_u32 v10, v11, 5, v10
    s_mul_i32 s36, s21, 6
    s_mul_i32 s37, s23, 3
    s_add_u32 s36, s36, s37
    s_lshl_b32 s36, s36, 17                ; kb*131072
    """)
    for j in range(3):
        for tt in range(2):
            g = ACC + (j * 2 + tt) * 16
            u = ACC + ((j + 3) * 2 + tt) * 16
            o = 16 + 8 * tt
            for p in range(8):
                a(f"""
                v_max_f32 v{g+2*p}, 0, v{g+2*p}
                v_max_f32 v{g+2*p+1}, 0, v{g+2*p+1}
                v_cvt_pk_bf16_f32 v32, v{g+2*p}, v{g+2*p+1}
                v_cvt_pk_bf16_f32 v33, v{u+2*p}, v{u+2*p+1}
                v_lshlrev_b32 v34, 16, v32
                v_and_b32 v35, 0xffff0000, v32
                v_lshlrev_b32 v36, 16, v33
                v_and_b32 v37, 0xffff0000, v33
                v_mul_f32 v34, v34, v36
                v_mul_f32 v35, v35, v37
                v_cvt_pk_bf16_f32 v{o+p}, v34, v35
                """)
            HF = os.environ.get("HFLAG", "")
            a(f"buffer_store_dwordx4 v[{o}:{o+3}], v10, s[16:19], s36 offen offset:{2048*tt} {HF}")
            a(f"buffer_store_dwordx4 v[{o+4}:{o+7}], v10, s[16:19], s36 offen offset:{2048*tt+16} {HF}")
        a(f"s_add_u32 s36, s36, {KBS}")
    stamp(a, 4)
    a("s_waitcnt vmcnt(0)")
    stamp(a, 5)
    stamp_dump(a, 6)
    a("s_endpgm")

def gen_g1_qkv(a):
    a("""
    s_sub_u32 s20, s2, 192
    s_and_b32 s21, s20, 3                  ; hg
    s_lshr_b32 s22, s20, 3
    s_lshl_b32 s22, s22, 1
    s_lshr_b32 s23, s20, 2
    s_and_b32 s23, s23, 1
    s_add_u32 s20, s22, s23                ; mi (0..15)
    s_lshr_b32 s22, s3, 2                  ; th = w>>2
    s_and_b32 s23, s3, 3                   ; cg = w&3
    """)
    a(f"s_mul_i32 s36, s21, {WQP_HG}")
    a(f"s_add_u32 s24, s4, {hex(WQP_OFF)}")
    a("s_addc_u32 s25, s5, 0")
    a("s_add_u32 s24, s24, s36")
    a("s_addc_u32 s25, s25, 0")
    a(f"s_mov_b32 s26, {WQP_HG}")
    a("s_mov_b32 s27, 0x00020000")
    for i in range(4):
        a(f"s_lshl_b32 s36, s3, 10")
        a(f"s_add_u32 s36, s36, {8192*i}")
        a(f"v_lshlrev_b32 v{2+i}, 4, v0")
        a(f"v_add_u32 v{2+i}, s36, v{2+i}")
    a("""
    v_lshrrev_b32 v10, 2, v0
    v_and_b32 v11, 3, v0
    v_lshrrev_b32 v12, 4, v0
    v_sub_u32 v12, 4, v12
    v_and_b32 v12, 3, v12
    v_xor_b32 v11, v11, v12
    v_lshlrev_b32 v6, 6, v10
    v_lshl_add_u32 v6, v11, 4, v6
    """)
    a("""
    s_mov_b32 s44, 0
    s_lshl_b32 s36, s20, 7                 ; 128*mi
    s_sub_u32 s37, s3, 3                   ; w-3
    s_lshl_b32 s37, s37, 5                 ; 32*(w-3) rows = 16*(2(w-3))
    s_add_u32 s36, s36, s37
    s_sub_u32 s36, s36, 16
    s_max_i32 s38, s36, 0
    s_lshl_b32 s38, s38, 6
    s_add_u32 s39, s36, 16
    s_lshl_b32 s39, s39, 6
    s_cmp_lt_u32 s3, 3
    s_cselect_b32 s28, s24, s12
    s_cselect_b32 s29, s25, s13
    s_cselect_b32 s30, s26, s14
    s_mov_b32 s31, 0x00020000
    s_cselect_b32 s45, s44, s38
    s_cselect_b32 s46, 0x7f000000, s39
    s_mov_b32 s47, 131072
    s_cselect_b32 s47, 27648, s47
    s_lshl_b32 s48, s3, 10
    s_add_u32 s48, s48, 10240
    s_add_u32 s37, s48, 24576
    s_sub_u32 s36, s3, 3
    s_lshl_b32 s36, s36, 11
    s_add_u32 s50, s36, 1024
    s_cmp_lt_u32 s3, 3
    s_cselect_b32 s49, s37, s36
    """)
    a(f"""
    s_cmp_lt_u32 s3, 3
    s_cselect_b32 s51, 1, 0                ; flag w<3
    v_mov_b32 v7, v6
    s_cmp_lt_u32 s3, 3
    s_cbranch_scc0 QK_S3TOK
    v_mov_b32 v7, v5
    """)
    a.label("QK_S3TOK")
    def dma(bufreg):
        a(f"""
        s_add_u32 m0, s{bufreg}, s48
        s_nop 0
        buffer_load_dwordx4 v2, s[24:27], s44 offen lds
        s_add_u32 m0, m0, 8192
        s_nop 0
        buffer_load_dwordx4 v3, s[24:27], s44 offen lds
        s_add_u32 m0, m0, 8192
        s_nop 0
        buffer_load_dwordx4 v4, s[24:27], s44 offen lds
        s_add_u32 m0, s{bufreg}, s49
        s_add_u32 s44, s44, 27648
        buffer_load_dwordx4 v7, s[28:31], s45 offen lds
        s_add_u32 m0, s{bufreg}, s50
        s_cmp_eq_u32 s51, 1
        s_cselect_b32 m0, {4*Q_STAGE}, m0
        s_add_u32 s45, s45, s47
        buffer_load_dwordx4 v6, s[12:15], s46 offen lds
        s_add_u32 s46, s46, 131072
        """)
    stamp(a, 0)
    for st in range(3):
        a(f"s_mov_b32 s32, {st*Q_STAGE}")
        dma(32)
    a(f"s_mov_b32 s32, {3*Q_STAGE}")
    a("s_mov_b32 s33, 0")
    a("""
    v_and_b32 v10, 15, v0
    v_lshrrev_b32 v11, 2, v10
    v_sub_u32 v11, 4, v11
    v_and_b32 v11, 3, v11
    v_lshrrev_b32 v12, 4, v0               ; g
    v_xor_b32 v11, v11, v12
    s_mul_i32 s36, s22, 80
    v_add_u32 v10, s36, v10
    v_lshlrev_b32 v8, 6, v10
    v_lshl_add_u32 v8, v11, 4, v8
    v_lshrrev_b32 v13, 2, v0
    v_and_b32 v13, 3, v13                  ; r
    v_lshl_add_u32 v13, v12, 2, v13        ; 4g+r
    v_mul_u32_u24 v9, 864, v13
    v_and_b32 v14, 3, v0
    v_lshl_add_u32 v9, v14, 3, v9
    s_mul_i32 s36, s23, 224
    s_add_u32 s36, s36, 10240
    v_add_u32 v9, s36, v9
    """)
    ACC = 100
    for r in range(140):
        a(f"v_mov_b32 v{ACC+r}, 0")
    TB = [16, 36]
    WB = [56 + 4 * j for j in range(7)]
    def rd_tok(buf, tt):
        t = TB[buf] + 4 * tt
        a(f"ds_read_b128 v[{t}:{t+3}], v10 offset:{1024*tt}")
    def rd_w(j, ad):
        w = WB[j]
        a(f"ds_read_b64_tr_b16 v[{w}:{w+1}], v{ad} offset:{32*j}")
        a(f"ds_read_b64_tr_b16 v[{w+2}:{w+3}], v{ad} offset:{32*j+16*864}")
    def mfma(j, buf):
        w = WB[j]
        for tt in range(5):
            acc = ACC + (j * 5 + tt) * 4
            t = TB[buf] + 4 * tt
            a(f"v_mfma_f32_16x16x32_bf16 v[{acc}:{acc+3}], v[{w}:{w+3}], v[{t}:{t+3}], v[{acc}:{acc+3}]")
    stamp(a, 1)
    a("s_waitcnt vmcnt(10)")
    a("s_barrier")
    stamp(a, 2)
    a("v_add_u32 v10, s33, v8")
    a("v_add_u32 v12, s33, v9")
    for tt in range(5):
        rd_tok(0, tt)
    for j in range(3):
        rd_w(j, 12)
    a("s_mov_b32 s34, 0")
    a.label("QK_LOOP")
    for half in range(2):
        a("s_waitcnt vmcnt(5)")
        a("s_barrier")
        dma(32)
        a(f"""
        s_add_u32 s32, s32, {Q_STAGE}
        s_cmp_eq_u32 s32, {4*Q_STAGE}
        s_cselect_b32 s32, 0, s32
        s_add_u32 s33, s33, {Q_STAGE}
        s_cmp_eq_u32 s33, {4*Q_STAGE}
        s_cselect_b32 s33, 0, s33
        v_mov_b32 v11, v12
        v_add_u32 v10, s33, v8
        v_add_u32 v12, s33, v9
        """)
        q = [f"W{j}{h}" for j in range(3) for h in "ab"]
        for j in range(7):
            idx = q.index(f"W{j}b")
            remain = len(q) - idx - 1
            a(f"s_waitcnt lgkmcnt({remain})")
            q = q[idx + 1:]
            mfma(j, half)
            if j < 5:
                rd_tok(1 - half, j); q.append(f"T{j}")
            jn = j + 3
            if jn < 7:
                rd_w(jn, 11); q += [f"W{jn}a", f"W{jn}b"]
            else:
                rd_w(jn - 7, 12); q += [f"n{jn-7}a", f"n{jn-7}b"]
            assert len(q) <= 15, len(q)
        assert q[-6:] == [f"n{j}{h}" for j in range(3) for h in "ab"], q
    a("""
    s_add_u32 s34, s34, 1
    s_cmp_lt_u32 s34, 9
    s_cbranch_scc1 QK_LOOP
    """)
    stamp(a, 3)
    a("""
    s_waitcnt vmcnt(0) lgkmcnt(0)
    s_barrier
    """)
    a(f"""
    v_and_b32 v10, 15, v0
    s_mul_i32 s36, s22, 80
    v_add_u32 v10, s36, v10
    v_mul_u32_u24 v10, {Q_RS}, v10
    v_lshrrev_b32 v11, 4, v0
    v_lshlrev_b32 v11, 2, v11
    s_mul_i32 s36, s23, 112
    v_add_u32 v11, s36, v11                ; c base (j=0,e=0)
    """)
    for j in range(7):
        for e in range(2):
            d = 16 + 2 * j + e
            a(f"""
            v_add_u32 v12, {16*j+2*e}, v11
            v_mul_u32_u24 v13, 456, v12
            v_lshrrev_b32 v13, 16, v13             ; seg = c/144
            v_mul_u32_u24 v14, 144, v13
            v_sub_u32 v12, v12, v14
            v_mul_u32_u24 v14, 3641, v12
            v_lshrrev_b32 v14, 16, v14             ; hd
            v_mul_u32_u24 v15, 18, v14
            v_sub_u32 v12, v12, v15                ; d
            v_mul_u32_u24 v13, 320, v13
            v_mul_u32_u24 v14, 40, v14
            v_add3_u32 v13, v13, v14, v10
            v_lshl_add_u32 v{d}, v12, 1, v13
            """)
    for tt in range(5):
        for j in range(7):
            acc = ACC + (j * 5 + tt) * 4
            a(f"v_cvt_pk_bf16_f32 v12, v{acc}, v{acc+1}")
            a(f"v_cvt_pk_bf16_f32 v13, v{acc+2}, v{acc+3}")
            a(f"ds_write_b32 v{16+2*j}, v12 offset:{16*tt*Q_RS}")
            a(f"ds_write_b32 v{17+2*j}, v13 offset:{16*tt*Q_RS}")
    a("""
    s_waitcnt lgkmcnt(0)
    s_barrier
    """)
    stamp(a, 4)
    a("s_mul_i32 s37, s3, 40")
    a("s_mov_b32 s35, 0x3e715bef              ; scale = 18^-0.5 (f32)")
    a("s_mov_b32 s43, 0x3fb8aa3b              ; log2(e)")
    a("s_mov_b32 s61, 0x05040100")
    a("s_mov_b32 s62, 0x07060302")
    def rd_row(dst, off):
        for i in range(4):
            a(f"ds_read_b64 v[{dst+2*i}:{dst+2*i+1}], v2 offset:{off+8*i}")
        a(f"ds_read_b32 v{dst+8}, v2 offset:{off+32}")
    KR = [32 + 10 * w for w in range(8)]
    VR = [152 + 10 * w for w in range(8)]
    for half in range(2):
        a(f"""
        v_add_u32 v1, {64*half}, v0
        v_add_u32 v2, 2, v1
        v_mul_u32_u24 v2, {Q_RS}, v2
        v_add_u32 v2, s37, v2
        s_lshl_b32 s38, s20, 7
        v_add_u32 v3, s38, v1
        """)
        rd_row(16, 14 * Q_RS)
        for w in range(8):
            rd_row(KR[w], (14 - 2 * w) * Q_RS + 320)
        for w in range(8):
            rd_row(VR[w], (14 - 2 * w) * Q_RS + 640)
        for w in range(8):
            n_after = (7 - w) * 5 + 40
            a(f"s_waitcnt lgkmcnt({min(n_after, 15)})")
            b = KR[w]
            a(f"v_mov_b32 v{112+w}, 0")
            for i in range(9):
                a(f"v_dot2_f32_bf16 v{112+w}, v{16+i}, v{b+i}, v{112+w}")
        a("v_mov_b32 v5, 0xce6e0000")
        for w in range(0, 8, 2):
            a(f"""
            v_cvt_pk_bf16_f32 v6, v{112+w}, v{113+w}
            v_lshlrev_b32 v{112+w}, 16, v6
            v_and_b32 v{113+w}, 0xffff0000, v6
            v_mul_f32 v{112+w}, s35, v{112+w}
            v_mul_f32 v{113+w}, s35, v{113+w}
            v_cvt_pk_bf16_f32 v6, v{112+w}, v{113+w}
            v_lshlrev_b32 v{112+w}, 16, v6
            v_and_b32 v{113+w}, 0xffff0000, v6
            """)
        for w in range(1, 8):
            a(f"""
            v_cmp_gt_u32 vcc, {2*w}, v3
            s_nop 1
            v_cndmask_b32 v{112+w}, v{112+w}, v5, vcc
            """)
        a("""
        v_max3_f32 v6, v112, v113, v114
        v_max3_f32 v6, v6, v115, v116
        v_max3_f32 v6, v6, v117, v118
        v_max_f32 v6, v6, v119
        """)
        for w in range(8):
            a(f"v_sub_f32 v{112+w}, v{112+w}, v6")
            a(f"v_mul_f32 v{112+w}, s43, v{112+w}")
            a(f"v_exp_f32 v{112+w}, v{112+w}")
        a("""
        s_nop 0
        v_add_f32 v6, v112, v113
        v_add_f32 v7, v114, v115
        v_add_f32 v8, v116, v117
        v_add_f32 v9, v118, v119
        v_add_f32 v6, v6, v7
        v_add_f32 v8, v8, v9
        v_add_f32 v6, v6, v8
        v_rcp_f32 v6, v6
        s_nop 0
        """)
        for w in range(8):
            a(f"v_mul_f32 v{112+w}, v{112+w}, v6")
        for p in range(4):
            a(f"v_cvt_pk_bf16_f32 v{120+p}, v{112+2*p}, v{113+2*p}")
        for d in range(18):
            a(f"v_mov_b32 v{124+d}, 0")
        a("s_waitcnt lgkmcnt(0)")
        for p in range(4):
            b0 = VR[2 * p]
            b1 = VR[2 * p + 1]
            for i in range(9):
                a(f"""
                v_perm_b32 v6, v{b1+i}, v{b0+i}, s61
                v_perm_b32 v7, v{b1+i}, v{b0+i}, s62
                v_dot2_f32_bf16 v{124+2*i}, v6, v{120+p}, v{124+2*i}
                v_dot2_f32_bf16 v{125+2*i}, v7, v{120+p}, v{125+2*i}
                """)
        for i in range(9):
            a(f"v_cvt_pk_bf16_f32 v{232+9*half+i}, v{124+2*i}, v{125+2*i}")
    a("""
    s_barrier
    s_mul_i32 s37, s3, 36
    v_mul_u32_u24 v2, 296, v0
    v_add_u32 v2, s37, v2
    """)
    for half in range(2):
        for i in range(9):
            a(f"ds_write_b32 v2, v{232+9*half+i} offset:{half*64*296 + 4*i}")
    a("""
    v_and_b32 v4, 7, v0
    v_lshrrev_b32 v5, 1, v4                ; g
    v_and_b32 v4, 1, v4                    ; a
    v_lshrrev_b32 v6, 3, v0
    s_lshl_b32 s36, s3, 3
    v_add_u32 v6, s36, v6                  ; trow
    v_lshlrev_b32 v7, 4, v4
    v_lshl_add_u32 v7, v5, 2, v7           ; 16a+4g
    s_and_b32 s36, s21, 1
    s_lshl_b32 s36, s36, 4
    v_subrev_u32 v7, s36, v7
    v_mul_u32_u24 v8, 296, v6
    v_lshl_add_u32 v8, v7, 1, v8
    s_lshl_b32 s36, s20, 7
    v_add_u32 v9, s36, v6
    v_lshlrev_b32 v9, 6, v9
    v_lshl_add_u32 v9, v5, 4, v9
    v_lshl_add_u32 v9, v4, 3, v9
    s_mul_i32 s36, s21, 9
    s_lshr_b32 s36, s36, 1
    s_add_u32 s36, s36, 144
    s_lshl_b32 s36, s36, 17
    v_mov_b32 v10, 0x7f000000
    v_cmp_gt_i32 vcc, 0, v7
    s_nop 1
    v_cndmask_b32 v11, v9, v10, vcc
    v_max_i32 v12, 0, v8
    v_add_u32 v13, 128, v7
    v_cmp_le_i32 vcc, 144, v13
    s_nop 1
    v_cndmask_b32 v13, v9, v10, vcc
    s_waitcnt lgkmcnt(0)
    s_barrier
    """)
    for b in range(5):
        for h in range(2):
            ad = 12 if b == 0 else 8
            a(f"ds_read_b64 v[{16+4*b+2*h}:{17+4*b+2*h}], v{ad} offset:{h*64*296 + 64*b}")
    for b in range(5):
        a(f"s_waitcnt lgkmcnt({8-2*b})")
        vo = 11 if b == 0 else (13 if b == 4 else 9)
        for h in range(2):
            a(f"buffer_store_dwordx2 v[{16+4*b+2*h}:{17+4*b+2*h}], v{vo}, s[16:19], s36 offen offset:{h*4096}" if h*4096 < 4096 else
              f"s_add_u32 s38, s36, 4096\n    buffer_store_dwordx2 v[{16+4*b+2*h}:{17+4*b+2*h}], v{vo}, s[16:19], s38 offen")
        a(f"s_add_u32 s36, s36, {KBS}")
    stamp(a, 5)
    a("s_waitcnt vmcnt(0)")
    stamp(a, 6)
    stamp_dump(a, 7)
    a("s_endpgm")

W_REG = 9216
def gen_g2(a):
    kernel_header(a, "g2_kernel")
    a("""
    s_cmp_ge_u32 s2, 256
    s_cbranch_scc1 G2_END
    s_load_dwordx2 s[4:5], s[0:1], 72      ; ws
    s_load_dwordx2 s[6:7], s[0:1], 48      ; W_down
    s_load_dwordx2 s[8:9], s[0:1], 16      ; wo
    s_load_dwordx2 s[10:11], s[0:1], 0     ; x
    s_load_dwordx2 s[40:41], s[0:1], 56    ; out
    v_lshrrev_b32 v1, 6, v0
    v_and_b32 v0, 63, v0
    s_nop 0
    v_readfirstlane_b32 s3, v1             ; wave
    s_and_b32 s20, s2, 7
    s_lshl_b32 s20, s20, 2
    s_lshr_b32 s21, s2, 3
    s_and_b32 s22, s21, 3
    s_add_u32 s20, s20, s22                ; mi = 4x + (q&3)
    s_lshr_b32 s21, s21, 2                 ; ni
    s_waitcnt lgkmcnt(0)
    """)
    srd(a, 16, 4, HC_BYTES, HC_OFF)
    a(f"s_mul_i32 s36, s21, {W2P_NI}")
    a(f"s_add_u32 s24, s4, {hex(W2P_OFF)}")
    a("s_addc_u32 s25, s5, 0")
    a("s_add_u32 s24, s24, s36")
    a("s_addc_u32 s25, s25, 0")
    a(f"s_mov_b32 s26, {W2P_NI}")
    a("s_mov_b32 s27, 0x00020000")
    srd(a, 44, 10, 2048 * 1152)
    srd(a, 48, 40, 2048 * 1152)
    a("""
    v_lshrrev_b32 v10, 2, v0
    v_and_b32 v11, 3, v0
    v_lshrrev_b32 v12, 4, v0
    v_sub_u32 v12, 4, v12
    v_and_b32 v12, 3, v12
    v_xor_b32 v11, v11, v12
    v_lshlrev_b32 v2, 6, v10
    v_lshl_add_u32 v2, v11, 4, v2
    s_lshl_b32 s52, s3, 17
    s_lshl_b32 s36, s20, 12                ; 64*mi*64
    s_add_u32 s52, s52, s36
    s_mul_i32 s53, s3, 4608
    s_mul_i32 s54, s3, 9216
    """)
    a("""
    v_lshlrev_b32 v3, 4, v0
    v_add_u32 v7, 4096, v3
    v_mov_b32 v10, 0x7f000000
    v_cmp_gt_u32 vcc, 32, v0
    s_nop 1
    v_cndmask_b32 v7, v10, v7, vcc
    """)
    def dma(bufreg):
        a(f"""
        s_mov_b32 m0, s{bufreg}
        s_nop 0
        buffer_load_dwordx4 v2, s[16:19], s52 offen lds
        buffer_load_dwordx4 v2, s[16:19], s52 offen offset:1024 lds
        buffer_load_dwordx4 v2, s[16:19], s52 offen offset:2048 lds
        buffer_load_dwordx4 v2, s[16:19], s52 offen offset:3072 lds
        s_add_u32 m0, s{bufreg}, 4096
        s_add_u32 s52, s52, {4*KBS}
        buffer_load_dwordx4 v3, s[24:27], s53 offen lds
        buffer_load_dwordx4 v3, s[24:27], s53 offen offset:1024 lds
        buffer_load_dwordx4 v3, s[24:27], s53 offen offset:2048 lds
        buffer_load_dwordx4 v3, s[24:27], s53 offen offset:3072 lds
        s_add_u32 m0, s{bufreg}, 8192
        s_nop 0
        buffer_load_dwordx4 v7, s[24:27], s53 offen lds
        s_add_u32 s53, s53, {4*4608}
        """)
    SET = 4 * W_REG
    stamp(a, 0)
    for st in range(3):
        a(f"s_add_u32 s32, s54, {st*SET}")
        dma(32)
    a(f"s_add_u32 s32, s54, {3*SET}")
    a("s_mov_b32 s33, s54")
    a(f"s_add_u32 s55, s54, {4*SET}")
    a("""
    v_and_b32 v10, 15, v0
    v_lshrrev_b32 v11, 2, v10
    v_sub_u32 v11, 4, v11
    v_and_b32 v11, 3, v11
    v_lshrrev_b32 v12, 4, v0
    v_xor_b32 v11, v11, v12
    v_lshlrev_b32 v8, 6, v10
    v_lshl_add_u32 v8, v11, 4, v8
    v_lshrrev_b32 v13, 2, v0
    v_and_b32 v13, 3, v13
    v_lshl_add_u32 v13, v12, 2, v13
    v_lshlrev_b32 v9, 5, v13
    v_and_b32 v14, 3, v0
    v_lshl_add_u32 v9, v14, 3, v9
    v_add_u32 v9, 4096, v9
    v_lshlrev_b32 v6, 4, v13
    v_lshl_add_u32 v6, v14, 3, v6
    v_add_u32 v6, 8192, v6
    """)
    ACC = 64
    for r in range(80):
        a(f"v_mov_b32 v{ACC+r}, 0")
    T = [16 + 4 * t for t in range(4)]
    W = [32 + 4 * j for j in range(5)]
    a("s_mov_b32 s34, 0")
    stamp(a, 1)
    a("s_waitcnt vmcnt(18)")
    stamp(a, 2)
    a.label("G2_LOOP")
    a("""
    s_waitcnt vmcnt(18)
    v_add_u32 v10, s33, v8
    v_add_u32 v11, s33, v9
    v_add_u32 v12, s33, v6
    """)
    for tt in range(4):
        a(f"ds_read_b128 v[{T[tt]}:{T[tt]+3}], v10 offset:{1024*tt}")
    for j in range(4):
        a(f"ds_read_b64_tr_b16 v[{W[j]}:{W[j]+1}], v11 offset:{1024*j}")
        a(f"ds_read_b64_tr_b16 v[{W[j]+2}:{W[j]+3}], v11 offset:{1024*j+512}")
    a(f"ds_read_b64_tr_b16 v[{W[4]}:{W[4]+1}], v12")
    a(f"ds_read_b64_tr_b16 v[{W[4]+2}:{W[4]+3}], v12 offset:256")
    dma(32)
    a(f"""
    s_add_u32 s32, s32, {SET}
    s_cmp_eq_u32 s32, s55
    s_cselect_b32 s32, s54, s32
    s_add_u32 s33, s33, {SET}
    s_cmp_eq_u32 s33, s55
    s_cselect_b32 s33, s54, s33
    """)
    for j in range(5):
        a(f"s_waitcnt lgkmcnt({2*(4-j)})")
        for tt in range(4):
            acc = ACC + (j * 4 + tt) * 4
            a(f"v_mfma_f32_16x16x32_bf16 v[{acc}:{acc+3}], v[{W[j]}:{W[j]+3}], v[{T[tt]}:{T[tt]+3}], v[{acc}:{acc+3}]")
    a("""
    s_add_u32 s34, s34, 1
    s_cmp_lt_u32 s34, 41
    s_cbranch_scc1 G2_LOOP
    s_waitcnt vmcnt(0)
    s_barrier
    """)
    stamp(a, 3)
    a("""
    s_mul_i32 s36, s3, 20480
    v_lshlrev_b32 v10, 4, v0
    v_add_u32 v10, s36, v10
    s_nop 7
    """)
    for tile in range(20):
        acc = ACC + tile * 4
        a(f"ds_write_b128 v10, v[{acc}:{acc+3}] offset:{tile*1024}")
    a("""
    v_and_b32 v11, 15, v0
    s_lshl_b32 s36, s20, 6
    s_lshl_b32 s37, s3, 4
    s_add_u32 s36, s36, s37
    v_add_u32 v11, s36, v11
    v_mul_u32_u24 v11, 1152, v11
    v_lshrrev_b32 v12, 4, v0
    v_lshl_add_u32 v11, v12, 3, v11
    s_mul_i32 s36, s21, 144
    v_add_u32 v11, s36, v11
    v_add_u32 v13, 128, v11
    v_mov_b32 v14, 0x7f000000
    v_cmp_gt_u32 vcc, 32, v0
    s_nop 1
    v_cndmask_b32 v13, v14, v13, vcc
    """)
    for j in range(4):
        a(f"buffer_load_dwordx2 v[{16+2*j}:{17+2*j}], v11, s[44:47], 0 offen offset:{32*j}")
    a("buffer_load_dwordx2 v[24:25], v13, s[44:47], 0 offen")
    a("""
    s_waitcnt lgkmcnt(0)
    s_barrier
    s_lshl_b32 s36, s3, 10
    v_lshlrev_b32 v10, 4, v0
    v_add_u32 v10, s36, v10
    """)
    a("v_add_u32 v15, 40960, v10")
    for j in range(5):
        for s in range(4):
            r = 64 + (j * 4 + s) * 4
            ad = 10 if s < 2 else 15
            a(f"ds_read_b128 v[{r}:{r+3}], v{ad} offset:{(s&1)*20480 + j*4096}")
    a("s_waitcnt vmcnt(0) lgkmcnt(0)")
    for j in range(5):
        r = 64 + j * 16
        for e in range(4):
            a(f"v_add_f32 v{r+e}, v{r+e}, v{r+4+e}")
            a(f"v_add_f32 v{r+8+e}, v{r+8+e}, v{r+12+e}")
            a(f"v_add_f32 v{r+e}, v{r+e}, v{r+8+e}")
        x = 16 + 2 * j
        a(f"""
        v_lshlrev_b32 v30, 16, v{x}
        v_and_b32 v31, 0xffff0000, v{x}
        v_lshlrev_b32 v32, 16, v{x+1}
        v_and_b32 v33, 0xffff0000, v{x+1}
        v_add_f32 v{r}, v{r}, v30
        v_add_f32 v{r+1}, v{r+1}, v31
        v_add_f32 v{r+2}, v{r+2}, v32
        v_add_f32 v{r+3}, v{r+3}, v33
        v_cvt_pk_bf16_f32 v{34+2*j}, v{r}, v{r+1}
        v_cvt_pk_bf16_f32 v{35+2*j}, v{r+2}, v{r+3}
        """)
        if j < 4:
            a(f"buffer_store_dwordx2 v[{34+2*j}:{35+2*j}], v11, s[48:51], 0 offen offset:{32*j}")
        else:
            a(f"buffer_store_dwordx2 v[{34+2*j}:{35+2*j}], v13, s[48:51], 0 offen")
    stamp(a, 4)
    a("s_waitcnt vmcnt(0)")
    stamp(a, 5)
    if os.environ.get("STAMP_G2"): stamp_dump(a, 6)
    a.label("G2_END")
    a("s_endpgm")

def main(path):
    a = A()
    hdr = open("cdna_kernels/" + NAME + ".s.ref").read().split("; Override launch")[0]
    out = hdr
    out += "; @launch kernel=ln_kernel grid=(976,1,1) block=(64,1,1) lds=0\n"
    out += "; @launch kernel=g1_kernel grid=(256,1,1) block=(512,1,1) lds=163840\n"
    out += "; @launch kernel=g2_kernel grid=(256,1,1) block=(256,1,1) lds=147456\n"
    out += '.amdgcn_target "amdgcn-amd-amdhsa--gfx950"\n.text\n'
    gen_ln(a)
    gen_g1(a)
    gen_g2(a)
    out += a.text()
    out += '.section .rodata,"a"\n.p2align 6\n'
    out += kd("ln_kernel", 136)
    out += ".p2align 6\n" + kd("g1_kernel", 256)
    out += ".p2align 6\n" + kd("g2_kernel", 144)
    open(path, "w").write(out)

if __name__ == "__main__":
    main(sys.argv[1] if len(sys.argv) > 1 else "cdna_kernels/" + NAME + ".s")
```

```python
import sys

NAME = "parallel_sum__sliding_local_dilated__glu_gated_reglu__prompt"

XN_OFF = 0
XN_BYTES = 18 * 2048 * 64
HC_OFF = 0x400000
HC_BYTES = 162 * 2048 * 64
W2P_OFF = 0x2000000
W2P_NI = 162 * 4608
WQP_OFF = 0x3000000
WQP_HG = 576 * 864
KBS = 2048 * 64

class A:
    def __init__(self):
        self.l = []
    def __call__(self, s):
        for line in s.strip("\n").split("\n"):
            self.l.append("    " + line.strip())
    def label(self, s):
        self.l.append(s + ":")
    def raw(self, s):
        self.l.append(s)
    def text(self):
        return "\n".join(self.l) + "\n"

def srd(a, d, base, nbytes, off=0):
    if off:
        a(f"s_add_u32 s{d}, s{base}, {hex(off)}")
        a(f"s_addc_u32 s{d+1}, s{base+1}, 0")
    else:
        a(f"s_mov_b32 s{d}, s{base}")
        a(f"s_mov_b32 s{d+1}, s{base+1}")
    a(f"s_mov_b32 s{d+2}, {hex(nbytes)}")
    a(f"s_mov_b32 s{d+3}, 0x00020000")

import os
STAMP = bool(os.environ.get("STAMP"))
def stamp(a, i):
    if STAMP:
        a(f"s_memtime s[{70+2*i}:{71+2*i}]")
def stamp_dump(a, n, wsreg=4):
    if not STAMP: return
    a("s_waitcnt lgkmcnt(0)")
    a(f"s_add_u32 s96, s{wsreg}, 0x8000000")
    a(f"s_addc_u32 s97, s{wsreg+1}, 0")
    a("s_mov_b32 s98, 0x1000000")
    a("s_mov_b32 s99, 0x00020000")
    a("s_lshl_b32 s94, s2, 4")
    a("s_add_u32 s94, s94, s3")
    a("s_lshl_b32 s94, s94, 6")
    a("v_mov_b32 v1, 0")
    for i in range(n):
        a(f"v_mov_b32 v2, s{70+2*i}")
        a(f"buffer_store_dword v2, v1, s[96:99], s94 offen offset:{4*i}")

def kernel_header(a, name):
    a.raw(f".globl {name}")
    a.raw(".p2align 8")
    a.raw(f".type {name},@function")
    a.label(name)

def kd(name, vgpr, sgpr=102):
    acc = (vgpr + 3) // 4 * 4
    return f""".amdhsa_kernel {name}
  .amdhsa_next_free_vgpr {vgpr}
  .amdhsa_next_free_sgpr {sgpr}
  .amdhsa_accum_offset {acc}
  .amdhsa_group_segment_fixed_size 0
  .amdhsa_kernarg_size 80
  .amdhsa_user_sgpr_count 2
  .amdhsa_user_sgpr_kernarg_segment_ptr 1
  .amdhsa_system_sgpr_workgroup_id_x 1
.end_amdhsa_kernel
"""

def gen_ln(a):
    kernel_header(a, "ln_kernel")
    a("""
    s_cmp_ge_u32 s2, 256
    s_cbranch_scc1 RP_ROLE
    s_load_dwordx2 s[4:5], s[0:1], 0
    s_load_dwordx2 s[6:7], s[0:1], 72
    v_lshrrev_b32 v1, 3, v0
    v_and_b32 v2, 7, v0                ; j
    s_lshl_b32 s3, s2, 3
    v_add_u32 v1, s3, v1               ; row
    v_lshrrev_b32 v3, 2, v2            ; j>>2
    v_and_b32 v4, 3, v2                ; g
    s_movk_i32 s16, 1152
    v_mul_lo_u32 v5, v1, s16
    v_lshl_add_u32 v5, v3, 6, v5
    v_lshl_add_u32 v5, v4, 3, v5
    v_lshlrev_b32 v6, 6, v1
    v_lshl_add_u32 v6, v4, 4, v6
    v_lshl_add_u32 v6, v3, 17, v6
    s_waitcnt lgkmcnt(0)
    """)
    srd(a, 8, 4, 2048 * 1152)
    srd(a, 12, 6, XN_BYTES, XN_OFF)
    for i in range(9):
        a(f"buffer_load_dwordx2 v[{8+4*i}:{9+4*i}], v5, s[8:11], 0 offen offset:{128*i}")
        a(f"buffer_load_dwordx2 v[{10+4*i}:{11+4*i}], v5, s[8:11], 0 offen offset:{128*i+32}")
    a("v_mov_b32 v50, 0")
    a("v_mov_b32 v51, 0")
    for i in range(9):
        a(f"s_waitcnt vmcnt({2*(8-i)})")
        for d in range(4):
            src = 8 + 4 * i + d
            lo = 64 + 8 * i + 2 * d
            a(f"v_lshlrev_b32 v{lo}, 16, v{src}")
            a(f"v_and_b32 v{lo+1}, 0xffff0000, v{src}")
            a(f"v_add_f32 v50, v50, v{lo}")
            a(f"v_add_f32 v51, v51, v{lo+1}")
    a("v_add_f32 v50, v50, v51")
    def red8(r):
        a(f"""
        s_nop 1
        v_add_f32_dpp v{r}, v{r}, v{r} quad_perm:[1,0,3,2] row_mask:0xf bank_mask:0xf
        s_nop 1
        v_add_f32_dpp v{r}, v{r}, v{r} quad_perm:[2,3,0,1] row_mask:0xf bank_mask:0xf
        s_nop 1
        v_add_f32_dpp v{r}, v{r}, v{r} row_half_mirror row_mask:0xf bank_mask:0xf
        """)
    red8(50)
    a("v_mul_f32 v50, 0x3ae38e39, v50     ; /576 -> mean (f32)")
    a("v_mov_b32 v52, 0")
    a("v_mov_b32 v53, 0")
    for e in range(0, 72, 2):
        a(f"v_sub_f32 v54, v{64+e}, v50")
        a(f"v_sub_f32 v55, v{65+e}, v50")
        a(f"v_fmac_f32 v52, v54, v54")
        a(f"v_fmac_f32 v53, v55, v55")
    a("v_add_f32 v52, v52, v53")
    red8(52)
    a("""
    v_mul_f32 v52, 0x3ae38e39, v52     ; var f32
    v_cvt_pk_bf16_f32 v54, v50, v52
    v_lshlrev_b32 v50, 16, v54         ; mean_b
    v_and_b32 v52, 0xffff0000, v54     ; var_b
    v_add_f32 v52, 0x3727c5ac, v52     ; + 1e-5
    v_cvt_pk_bf16_f32 v54, v52, v52
    v_lshlrev_b32 v52, 16, v54
    v_sqrt_f32 v52, v52
    s_nop 0
    v_cvt_pk_bf16_f32 v54, v52, v52
    v_lshlrev_b32 v52, 16, v54
    v_rcp_f32 v53, v52                 ; rinv
    s_nop 0
    """)
    for i in range(9):
        for d in range(4):
            lo = 64 + 8 * i + 2 * d
            dst = 8 + 4 * i + d
            a(f"""
            v_sub_f32 v54, v{lo}, v50
            v_sub_f32 v55, v{lo+1}, v50
            v_cvt_pk_bf16_f32 v56, v54, v55
            v_lshlrev_b32 v54, 16, v56
            v_and_b32 v55, 0xffff0000, v56
            v_mul_f32 v56, v54, v53
            v_mul_f32 v57, v55, v53
            v_fma_f32 v58, -v56, v52, v54
            v_fma_f32 v59, -v57, v52, v55
            v_fmac_f32 v56, v58, v53
            v_fmac_f32 v57, v59, v53
            v_cvt_pk_bf16_f32 v{dst}, v56, v57
            """)
        a(f"s_mov_b32 s17, {2*KBS*i}")
        a(f"buffer_store_dwordx4 v[{8+4*i}:{11+4*i}], v6, s[12:15], s17 offen")
    a.label("LN_END")
    a("s_endpgm")
    a.label("RP_ROLE")
    if os.environ.get("PREFETCH"):
        a("""
        s_cmp_ge_u32 s2, 1624
        s_cbranch_scc1 LN_END
        s_cmp_lt_u32 s2, 976
        s_cbranch_scc1 RP_ROLE2
        s_load_dwordx2 s[4:5], s[0:1], 32      ; W_gate
        s_load_dwordx2 s[6:7], s[0:1], 40      ; W_up
        s_sub_u32 s20, s2, 976                 ; 0..647
        s_waitcnt lgkmcnt(0)
        s_cmp_ge_u32 s20, 324
        s_cselect_b32 s12, s6, s4
        s_cselect_b32 s13, s7, s5
        s_mov_b32 s14, 5308416
        s_mov_b32 s15, 0x00020000
        s_sub_u32 s21, s20, 324
        s_cmp_ge_u32 s20, 324
        s_cselect_b32 s21, s21, s20
        s_lshl_b32 s21, s21, 14
        v_lshlrev_b32 v1, 4, v0
        """)
        for i in range(16):
            a(f"buffer_load_dwordx4 v[{8+4*i}:{11+4*i}], v1, s[12:15], s21 offen offset:{(1024*i)%4096}")
            if i % 4 == 3:
                a("s_add_u32 s21, s21, 4096")
        a("s_waitcnt vmcnt(0)")
        a("s_endpgm")
        a.label("RP_ROLE2")
    a("""
    s_cmp_ge_u32 s2, 976
    s_cbranch_scc1 LN_END
    s_load_dwordx2 s[4:5], s[0:1], 72      ; ws
    s_load_dwordx2 s[6:7], s[0:1], 48      ; W_down
    s_load_dwordx2 s[8:9], s[0:1], 16      ; wo
    s_load_dwordx2 s[10:11], s[0:1], 8     ; wqkv
    s_cmp_ge_u32 s2, 904
    s_cbranch_scc1 RPQ_ROLE
    s_sub_u32 s20, s2, 256
    s_lshl_b32 s20, s20, 3
    s_waitcnt lgkmcnt(0)
    s_sub_u32 s21, s20, 4608
    s_cmp_ge_u32 s20, 4608
    s_cselect_b32 s12, s8, s6
    s_cselect_b32 s13, s9, s7
    s_mov_b32 s14, 5308416
    s_mov_b32 s15, 0x00020000
    s_cselect_b32 s21, s21, s20
    s_mul_i32 s21, s21, 1152
    """)
    srd(a, 16, 4, 8 * W2P_NI, W2P_OFF)
    a("""
    s_lshr_b32 s22, s20, 5
    s_mul_i32 s22, s22, 4608
    s_and_b32 s23, s20, 31
    v_lshlrev_b32 v1, 4, v0
    """)
    for i in range(9):
        a(f"buffer_load_dwordx4 v[{8+4*i}:{11+4*i}], v1, s[12:15], s21 offen offset:{(1024*i)%4096}")
        if i % 4 == 3:
            a("s_add_u32 s21, s21, 4096")
    for i in range(9):
        a(f"""
        v_add_u32 v2, {64*i}, v0
        v_mul_u32_u24 v3, 911, v2
        v_lshrrev_b32 v3, 16, v3               ; row = P/72
        v_mul_u32_u24 v4, 72, v3
        v_sub_u32 v4, v2, v4                   ; u
        v_mul_u32_u24 v5, 7282, v4
        v_lshrrev_b32 v5, 16, v5               ; ni
        v_mul_u32_u24 v6, 9, v5
        v_sub_u32 v6, v4, v6                   ; c
        v_add_u32 v3, s23, v3                  ; r
        v_lshrrev_b32 v7, 1, v6
        v_lshlrev_b32 v7, 10, v7
        v_lshl_add_u32 v7, v3, 5, v7
        v_and_b32 v50, 1, v6
        v_lshl_add_u32 v7, v50, 4, v7          ; c<8 form
        v_lshlrev_b32 v50, 4, v3
        v_add_u32 v50, 4096, v50               ; c==8 form
        v_cmp_eq_u32 vcc, 8, v6
        s_mov_b32 s24, {W2P_NI}
        v_mul_lo_u32 v5, v5, s24
        v_cndmask_b32 v7, v7, v50, vcc
        v_add_u32 v7, v7, v5
        s_waitcnt vmcnt(8)
        buffer_store_dwordx4 v[{8+4*i}:{11+4*i}], v7, s[16:19], s22 offen
        """)
    a("s_endpgm")
    a.label("RPQ_ROLE")
    a("""
    s_sub_u32 s20, s2, 904                 ; 0..71 : rows 8*s20..
    s_lshl_b32 s20, s20, 3
    s_waitcnt lgkmcnt(0)
    """)
    srd(a, 12, 10, 576 * 3456)
    srd(a, 16, 4, 4 * WQP_HG, WQP_OFF)
    a("""
    s_mul_i32 s21, s20, 3456
    s_mul_i32 s22, s20, 864
    v_lshlrev_b32 v1, 4, v0
    """)
    for i in range(27):
        a(f"buffer_load_dwordx4 v[{8+4*i}:{11+4*i}], v1, s[12:15], s21 offen offset:{(1024*i)%4096}")
        if i % 4 == 3:
            a("s_add_u32 s21, s21, 4096")
    for i in range(27):
        a(f"""
        v_add_u32 v2, {64*i}, v0
        v_mul_u32_u24 v3, 1214, v2
        v_lshrrev_b32 v3, 18, v3               ; row = P/216
        v_mul_u32_u24 v4, 216, v3
        v_sub_u32 v4, v2, v4                   ; u
        v_mul_u32_u24 v5, 911, v4
        v_lshrrev_b32 v5, 16, v5               ; seg
        v_mul_u32_u24 v6, 72, v5
        v_sub_u32 v6, v4, v6                   ; w
        v_mul_u32_u24 v7, 3641, v6
        v_lshrrev_b32 v7, 16, v7               ; hg
        v_mul_u32_u24 v120, 18, v7
        v_sub_u32 v6, v6, v120                 ; c
        v_mul_u32_u24 v5, 18, v5
        v_add_u32 v6, v6, v5
        v_mul_u32_u24 v3, 864, v3
        v_lshl_add_u32 v3, v6, 4, v3
        s_mov_b32 s24, {WQP_HG}
        v_mul_lo_u32 v7, v7, s24
        v_add_u32 v3, v3, v7
        s_waitcnt vmcnt(26)
        buffer_store_dwordx4 v[{8+4*i}:{11+4*i}], v3, s[16:19], s22 offen
        """)
    a("s_endpgm")

G_STAGE = 40960
Q_STAGE = 37888
Q_RS = 1000

def gen_g1(a):
    kernel_header(a, "g1_kernel")
    a("""
    s_cmp_ge_u32 s2, 256
    s_cbranch_scc1 G1_END
    s_load_dwordx2 s[4:5], s[0:1], 72      ; ws
    s_load_dwordx2 s[6:7], s[0:1], 32      ; W_gate
    s_load_dwordx2 s[8:9], s[0:1], 40      ; W_up
    s_load_dwordx2 s[10:11], s[0:1], 8     ; wqkv
    v_lshrrev_b32 v1, 6, v0
    v_and_b32 v0, 63, v0                   ; lane
    s_nop 0
    v_readfirstlane_b32 s3, v1
    s_waitcnt lgkmcnt(0)
    """)
    srd(a, 12, 4, XN_BYTES, XN_OFF)
    srd(a, 16, 4, HC_BYTES, HC_OFF)
    a("""
    s_cmp_ge_u32 s2, 192
    s_cbranch_scc1 QKV_ROLE
    """)
    import os
    if os.environ.get("SKIP_GU"): a("s_endpgm")
    gen_g1_gateup(a)
    a.label("QKV_ROLE")
    if os.environ.get("SKIP_QKV"): a("s_endpgm")
    gen_g1_qkv(a)
    a.label("G1_END")
    a("s_endpgm")

def gen_g1_gateup(a):
    a("""
    s_lshr_b32 s20, s2, 3
    s_and_b32 s20, s20, 7                  ; mi
    s_and_b32 s21, s2, 7
    s_mul_i32 s21, s21, 3
    s_lshr_b32 s22, s2, 6
    s_add_u32 s21, s21, s22                ; fi
    s_lshr_b32 s22, s3, 1                  ; tw = w>>1  (0..3)
    s_and_b32 s23, s3, 1                   ; fw = w&1
    """)
    a("""
    s_cmp_ge_u32 s3, 4
    s_cselect_b32 s24, s8, s6
    s_cselect_b32 s25, s9, s7
    s_mov_b32 s26, 5308416
    s_mov_b32 s27, 0x00020000
    """)
    a("""
    s_lshl_b32 s28, s20, 14                ; 256*mi*64
    s_lshl_b32 s36, s3, 11                 ; 2w*16 rows*64B = w*2048
    s_add_u32 s28, s28, s36
    s_mov_b32 s30, s36
    s_and_b32 s36, s3, 3                   ; a
    s_mul_i32 s29, s36, 73728              ; 8a*9216
    s_mul_i32 s37, s21, 384
    s_add_u32 s29, s29, s37
    s_mul_i32 s31, s36, 3072
    s_lshr_b32 s37, s3, 2
    s_mul_i32 s37, s37, 12288
    s_add_u32 s31, s31, s37
    s_add_u32 s31, s31, 16384
    """)
    a("""
    v_lshrrev_b32 v10, 2, v0
    v_and_b32 v11, 3, v0
    v_lshrrev_b32 v12, 4, v0
    v_xor_b32 v11, v11, v12
    v_lshlrev_b32 v2, 6, v10
    v_lshl_add_u32 v2, v11, 4, v2
    """)
    for b in range(3):
        a(f"""
        v_add_u32 v10, {64*b}, v0
        v_mul_u32_u24 v11, 2731, v10
        v_lshrrev_b32 v11, 16, v11             ; k = P/24
        v_mul_u32_u24 v12, 24, v11
        v_sub_u32 v12, v10, v12                ; u'
        v_lshrrev_b32 v13, 1, v11
        v_and_b32 v13, 1, v13
        v_lshlrev_b32 v13, 2, v13
        v_xor_b32 v12, v12, v13                ; u
        v_mul_u32_u24 v11, 9216, v11
        v_lshl_add_u32 v{3+b}, v12, 4, v11
        """)
        if b:
            a(f"v_subrev_u32 v{3+b}, {1024*b}, v{3+b}")
    a("""
    v_and_b32 v10, 31, v0
    s_lshl_b32 s36, s22, 6
    v_add_u32 v10, s36, v10
    v_lshrrev_b32 v11, 5, v0               ; hh
    v_lshrrev_b32 v12, 2, v0
    v_and_b32 v12, 3, v12                  ; r == (l>>2)&3
    v_xor_b32 v13, v11, v12
    v_lshlrev_b32 v6, 6, v10
    v_lshl_add_u32 v6, v13, 4, v6
    v_xor_b32 v7, 32, v6
    """)
    a("""
    v_lshrrev_b32 v13, 4, v0
    v_and_b32 v13, 1, v13
    v_and_b32 v14, 3, v0
    v_lshl_add_u32 v13, v13, 2, v14        ; c
    v_and_b32 v14, 1, v13                  ; hho
    v_lshrrev_b32 v15, 1, v13              ; q
    v_lshrrev_b32 v16, 1, v15              ; q>>1
    v_and_b32 v15, 1, v15                  ; q&1
    v_lshl_add_u32 v14, v14, 1, v16
    v_lshl_add_u32 v14, v15, 2, v14        ; e
    v_lshl_add_u32 v15, v11, 2, v12        ; 4hh + r
    v_mul_u32_u24 v15, 384, v15
    v_lshl_add_u32 v15, v14, 3, v15
    s_mul_i32 s36, s23, 192
    s_add_u32 s36, s36, 16384
    v_add_u32 v15, s36, v15                ; const
    v_lshrrev_b32 v16, 1, v12              ; b
    v_lshlrev_b32 v16, 6, v16              ; 64b
    s_cmp_eq_u32 s23, 0
    s_cselect_b32 s36, 1, -1
    v_mul_lo_u32 v16, v16, s36
    v_add_u32 v8, v15, v16
    v_sub_u32 v9, v15, v16
    """)
    def dma_parts(bufreg):
        return [
        f"""s_add_u32 m0, s{bufreg}, s30
        s_nop 0
        buffer_load_dwordx4 v2, s[12:15], s28 offen lds""",
        f"""buffer_load_dwordx4 v2, s[12:15], s28 offen offset:1024 lds
        s_add_u32 s28, s28, {KBS}""",
        f"""s_add_u32 m0, s{bufreg}, s31
        s_nop 0
        buffer_load_dwordx4 v3, s[24:27], s29 offen lds""",
        f"""buffer_load_dwordx4 v4, s[24:27], s29 offen offset:1024 lds""",
        f"""buffer_load_dwordx4 v5, s[24:27], s29 offen offset:2048 lds
        s_add_u32 s29, s29, {32*9216}"""]
    def dma(bufreg):
        for p in dma_parts(bufreg):
            a(p)
    stamp(a, 0)
    a("s_mov_b32 s32, 0")
    dma(32)
    ACC = 64
    for r in range(192):
        a(f"v_mov_b32 v{ACC+r}, 0")
    for st in range(1, 3):
        a(f"s_mov_b32 s32, {st*G_STAGE}")
        dma(32)
    a(f"s_mov_b32 s32, {3*G_STAGE}")
    a("s_mov_b32 s33, 0")
    TB = [40, 48]
    WB = [16, 20, 24, 28, 32, 36]
    def set_addrs():
        a("""
        v_add_u32 v10, s33, v6
        v_add_u32 v11, s33, v7
        v_add_u32 v12, s33, v8
        v_add_u32 v13, s33, v9
        """)
    def rd_tok(buf, ks):
        ad = 10 + ks
        a(f"ds_read_b128 v[{TB[buf]}:{TB[buf]+3}], v{ad}")
        a(f"ds_read_b128 v[{TB[buf]+4}:{TB[buf]+7}], v{ad} offset:2048")
    def rd_w(j, ks):
        jj = j % 3
        mat = j // 3
        ad = 12 + (jj & 1)
        off = 64 * jj + 3072 * ks + 12288 * mat
        w = WB[j]
        a(f"ds_read_b64_tr_b16 v[{w}:{w+1}], v{ad} offset:{off}")
        a(f"ds_read_b64_tr_b16 v[{w+2}:{w+3}], v{ad} offset:{off+6144}")
    def mfma(j, buf):
        w = WB[j]
        for tt in range(2):
            acc = ACC + (j * 2 + tt) * 16
            t = TB[buf] + 4 * tt
            a(f"v_mfma_f32_32x32x16_bf16 v[{acc}:{acc+15}], v[{w}:{w+3}], v[{t}:{t+3}], v[{acc}:{acc+15}]")
    stamp(a, 1)
    a("s_waitcnt vmcnt(10)")
    a("s_barrier")
    stamp(a, 2)
    set_addrs()
    rd_tok(0, 0)
    for j in range(6):
        rd_w(j, 0)
    a("s_mov_b32 s34, 0")
    a.label("GU_LOOP")
    rd_tok(1, 1)
    for j in range(6):
        a("s_waitcnt lgkmcnt(12)")
        mfma(j, 0)
        rd_w(j, 1)
    a("s_waitcnt vmcnt(5)")
    a("s_barrier")
    a(f"""
    s_add_u32 s33, s33, {G_STAGE}
    s_cmp_eq_u32 s33, {4*G_STAGE}
    s_cselect_b32 s33, 0, s33
    """)
    set_addrs()
    rd_tok(0, 0)
    parts = dma_parts(32)
    for j in range(6):
        a("s_waitcnt lgkmcnt(12)")
        mfma(j, 1)
        rd_w(j, 0)
        if j < 5:
            a(parts[j])
    a(f"""
    s_add_u32 s32, s32, {G_STAGE}
    s_cmp_eq_u32 s32, {4*G_STAGE}
    s_cselect_b32 s32, 0, s32
    """)
    a("""
    s_add_u32 s34, s34, 1
    s_cmp_lt_u32 s34, 18
    s_cbranch_scc1 GU_LOOP
    """)
    a("""
    s_waitcnt lgkmcnt(0)
    s_nop 15
    """)
    stamp(a, 3)
    a("""
    v_and_b32 v10, 31, v0
    s_lshl_b32 s36, s20, 8
    s_lshl_b32 s37, s22, 6
    s_add_u32 s36, s36, s37
    v_add_u32 v10, s36, v10
    v_lshlrev_b32 v10, 6, v10
    v_lshrrev_b32 v11, 5, v0
    v_lshl_add_u32 v10, v11, 5, v10
    s_mul_i32 s36, s21, 6
    s_mul_i32 s37, s23, 3
    s_add_u32 s36, s36, s37
    s_lshl_b32 s36, s36, 17                ; kb*131072
    """)
    for j in range(3):
        for tt in range(2):
            g = ACC + (j * 2 + tt) * 16
            u = ACC + ((j + 3) * 2 + tt) * 16
            o = 16 + 8 * tt
            for p in range(8):
                a(f"""
                v_cvt_pk_bf16_f32 v32, v{g+2*p}, v{g+2*p+1}
                v_cvt_pk_bf16_f32 v33, v{u+2*p}, v{u+2*p+1}
                v_pk_max_i16 v32, v32, 0
                v_lshlrev_b32 v34, 16, v32
                v_and_b32 v35, 0xffff0000, v32
                v_lshlrev_b32 v36, 16, v33
                v_and_b32 v37, 0xffff0000, v33
                v_mul_f32 v34, v34, v36
                v_mul_f32 v35, v35, v37
                v_cvt_pk_bf16_f32 v{o+p}, v34, v35
                """)
            HF = os.environ.get("HFLAG", "")
            a(f"buffer_store_dwordx4 v[{o}:{o+3}], v10, s[16:19], s36 offen offset:{2048*tt} {HF}")
            a(f"buffer_store_dwordx4 v[{o+4}:{o+7}], v10, s[16:19], s36 offen offset:{2048*tt+16} {HF}")
        a(f"s_add_u32 s36, s36, {KBS}")
    stamp(a, 4)
    a("s_waitcnt vmcnt(0)")
    stamp(a, 5)
    stamp_dump(a, 6)
    a("s_endpgm")

def gen_g1_qkv(a):
    a("""
    s_sub_u32 s20, s2, 192
    s_and_b32 s21, s20, 3                  ; hg
    s_lshr_b32 s22, s20, 3
    s_lshl_b32 s22, s22, 1
    s_lshr_b32 s23, s20, 2
    s_and_b32 s23, s23, 1
    s_add_u32 s20, s22, s23                ; mi (0..15)
    s_lshr_b32 s22, s3, 2                  ; th = w>>2
    s_and_b32 s23, s3, 3                   ; cg = w&3
    """)
    a(f"s_mul_i32 s36, s21, {WQP_HG}")
    a(f"s_add_u32 s24, s4, {hex(WQP_OFF)}")
    a("s_addc_u32 s25, s5, 0")
    a("s_add_u32 s24, s24, s36")
    a("s_addc_u32 s25, s25, 0")
    a(f"s_mov_b32 s26, {WQP_HG}")
    a("s_mov_b32 s27, 0x00020000")
    for i in range(4):
        a(f"s_lshl_b32 s36, s3, 10")
        a(f"s_add_u32 s36, s36, {8192*i}")
        a(f"v_lshlrev_b32 v{2+i}, 4, v0")
        a(f"v_add_u32 v{2+i}, s36, v{2+i}")
    a("""
    v_lshrrev_b32 v10, 2, v0
    v_and_b32 v11, 3, v0
    v_lshrrev_b32 v12, 4, v0
    v_sub_u32 v12, 4, v12
    v_and_b32 v12, 3, v12
    v_xor_b32 v11, v11, v12
    v_lshlrev_b32 v6, 6, v10
    v_lshl_add_u32 v6, v11, 4, v6
    """)
    a("""
    s_mov_b32 s44, 0
    s_lshl_b32 s36, s20, 7                 ; 128*mi
    s_sub_u32 s37, s3, 3                   ; w-3
    s_lshl_b32 s37, s37, 5                 ; 32*(w-3) rows = 16*(2(w-3))
    s_add_u32 s36, s36, s37
    s_sub_u32 s36, s36, 16
    s_max_i32 s38, s36, 0
    s_lshl_b32 s38, s38, 6
    s_add_u32 s39, s36, 16
    s_lshl_b32 s39, s39, 6
    s_cmp_lt_u32 s3, 3
    s_cselect_b32 s28, s24, s12
    s_cselect_b32 s29, s25, s13
    s_cselect_b32 s30, s26, s14
    s_mov_b32 s31, 0x00020000
    s_cselect_b32 s45, s44, s38
    s_cselect_b32 s46, 0x7f000000, s39
    s_mov_b32 s47, 131072
    s_cselect_b32 s47, 27648, s47
    s_lshl_b32 s48, s3, 10
    s_add_u32 s48, s48, 10240
    s_add_u32 s37, s48, 24576
    s_sub_u32 s36, s3, 3
    s_lshl_b32 s36, s36, 11
    s_add_u32 s50, s36, 1024
    s_cmp_lt_u32 s3, 3
    s_cselect_b32 s49, s37, s36
    """)
    a(f"""
    s_cmp_lt_u32 s3, 3
    s_cselect_b32 s51, 1, 0                ; flag w<3
    v_mov_b32 v7, v6
    s_cmp_lt_u32 s3, 3
    s_cbranch_scc0 QK_S3TOK
    v_mov_b32 v7, v5
    """)
    a.label("QK_S3TOK")
    def dma_parts(bufreg):
        return [
        f"""s_add_u32 m0, s{bufreg}, s48
        s_nop 0
        buffer_load_dwordx4 v2, s[24:27], s44 offen lds""",
        f"""s_add_u32 m0, m0, 8192
        s_nop 0
        buffer_load_dwordx4 v3, s[24:27], s44 offen lds""",
        f"""s_add_u32 m0, m0, 8192
        s_nop 0
        buffer_load_dwordx4 v4, s[24:27], s44 offen lds""",
        f"""s_add_u32 m0, s{bufreg}, s49
        s_add_u32 s44, s44, 27648
        buffer_load_dwordx4 v7, s[28:31], s45 offen lds""",
        f"""s_add_u32 m0, s{bufreg}, s50
        s_cmp_eq_u32 s51, 1
        s_cselect_b32 m0, {4*Q_STAGE}, m0
        s_add_u32 s45, s45, s47
        buffer_load_dwordx4 v6, s[12:15], s46 offen lds
        s_add_u32 s46, s46, 131072"""]
    def dma(bufreg):
        for p in dma_parts(bufreg):
            a(p)
    stamp(a, 0)
    a("s_mov_b32 s32, 0")
    dma(32)
    a("""
    v_and_b32 v10, 15, v0
    v_lshrrev_b32 v11, 2, v10
    v_sub_u32 v11, 4, v11
    v_and_b32 v11, 3, v11
    v_lshrrev_b32 v12, 4, v0               ; g
    v_xor_b32 v11, v11, v12
    s_mul_i32 s36, s22, 80
    v_add_u32 v10, s36, v10
    v_lshlrev_b32 v8, 6, v10
    v_lshl_add_u32 v8, v11, 4, v8
    v_lshrrev_b32 v13, 2, v0
    v_and_b32 v13, 3, v13                  ; r
    v_lshl_add_u32 v13, v12, 2, v13        ; 4g+r
    v_mul_u32_u24 v9, 864, v13
    v_and_b32 v14, 3, v0
    v_lshl_add_u32 v9, v14, 3, v9
    s_mul_i32 s36, s23, 224
    s_add_u32 s36, s36, 10240
    v_add_u32 v9, s36, v9
    """)
    ACC = 100
    for r in range(140):
        a(f"v_mov_b32 v{ACC+r}, 0")
    a(f"""
    v_and_b32 v10, 15, v0
    s_mul_i32 s36, s22, 80
    v_add_u32 v10, s36, v10
    v_mul_u32_u24 v10, {Q_RS}, v10
    v_lshrrev_b32 v11, 4, v0
    v_lshlrev_b32 v11, 2, v11
    s_mul_i32 s36, s23, 112
    v_add_u32 v11, s36, v11                ; c base (j=0,e=0)
    """)
    for j in range(7):
        for e in range(2):
            d = 84 + 2 * j + e
            a(f"""
            v_add_u32 v12, {16*j+2*e}, v11
            v_mul_u32_u24 v13, 456, v12
            v_lshrrev_b32 v13, 16, v13             ; seg = c/144
            v_mul_u32_u24 v14, 144, v13
            v_sub_u32 v12, v12, v14
            v_mul_u32_u24 v14, 3641, v12
            v_lshrrev_b32 v14, 16, v14             ; hd
            v_mul_u32_u24 v15, 18, v14
            v_sub_u32 v12, v12, v15                ; d
            v_mul_u32_u24 v13, 320, v13
            v_mul_u32_u24 v14, 40, v14
            v_add3_u32 v13, v13, v14, v10
            v_lshl_add_u32 v{d}, v12, 1, v13
            """)
    for st in range(1, 3):
        a(f"s_mov_b32 s32, {st*Q_STAGE}")
        dma(32)
    a(f"s_mov_b32 s32, {3*Q_STAGE}")
    a("s_mov_b32 s33, 0")
    TB = [16, 36]
    WB = [56 + 4 * j for j in range(7)]
    def rd_tok(buf, tt):
        t = TB[buf] + 4 * tt
        a(f"ds_read_b128 v[{t}:{t+3}], v10 offset:{1024*tt}")
    def rd_w(j, ad):
        w = WB[j]
        a(f"ds_read_b64_tr_b16 v[{w}:{w+1}], v{ad} offset:{32*j}")
        a(f"ds_read_b64_tr_b16 v[{w+2}:{w+3}], v{ad} offset:{32*j+16*864}")
    lab = [0]
    def mfma(j, buf):
        w = WB[j]
        for tt in range(5):
            acc = ACC + (j * 5 + tt) * 4
            t = TB[buf] + 4 * tt
            if tt == 4:
                lab[0] += 1
                a("s_cmp_eq_u32 s22, 1")
                a(f"s_cbranch_scc1 QK_SK{lab[0]}")
            a(f"v_mfma_f32_16x16x32_bf16 v[{acc}:{acc+3}], v[{w}:{w+3}], v[{t}:{t+3}], v[{acc}:{acc+3}]")
            if tt == 4:
                a.label(f"QK_SK{lab[0]}")
    stamp(a, 1)
    a("s_waitcnt vmcnt(10)")
    a("s_barrier")
    stamp(a, 2)
    a("v_add_u32 v10, s33, v8")
    a("v_add_u32 v12, s33, v9")
    for tt in range(5):
        rd_tok(0, tt)
    for j in range(3):
        rd_w(j, 12)
    a("s_mov_b32 s34, 0")
    a.label("QK_LOOP")
    for half in range(2):
        a("s_waitcnt vmcnt(5)")
        a("s_barrier")
        parts = dma_parts(32)
        a(f"""
        s_add_u32 s33, s33, {Q_STAGE}
        s_cmp_eq_u32 s33, {4*Q_STAGE}
        s_cselect_b32 s33, 0, s33
        v_mov_b32 v11, v12
        v_add_u32 v10, s33, v8
        v_add_u32 v12, s33, v9
        """)
        q = [f"W{j}{h}" for j in range(3) for h in "ab"]
        for j in range(7):
            idx = q.index(f"W{j}b")
            remain = len(q) - idx - 1
            a(f"s_waitcnt lgkmcnt({remain})")
            q = q[idx + 1:]
            mfma(j, half)
            if j < 5:
                rd_tok(1 - half, j); q.append(f"T{j}")
            jn = j + 3
            if jn < 7:
                rd_w(jn, 11); q += [f"W{jn}a", f"W{jn}b"]
            else:
                rd_w(jn - 7, 12); q += [f"n{jn-7}a", f"n{jn-7}b"]
            assert len(q) <= 15, len(q)
            if j < 5:
                a(parts[j])
        a(f"""
        s_add_u32 s32, s32, {Q_STAGE}
        s_cmp_eq_u32 s32, {4*Q_STAGE}
        s_cselect_b32 s32, 0, s32
        """)
        assert q[-6:] == [f"n{j}{h}" for j in range(3) for h in "ab"], q
    a("""
    s_add_u32 s34, s34, 1
    s_cmp_lt_u32 s34, 9
    s_cbranch_scc1 QK_LOOP
    """)
    stamp(a, 3)
    a("""
    s_waitcnt vmcnt(0) lgkmcnt(0)
    s_barrier
    """)
    for tt in range(5):
        for j in range(7):
            acc = ACC + (j * 5 + tt) * 4
            a(f"v_cvt_pk_bf16_f32 v12, v{acc}, v{acc+1}")
            a(f"v_cvt_pk_bf16_f32 v13, v{acc+2}, v{acc+3}")
            a(f"ds_write_b32 v{84+2*j}, v12 offset:{16*tt*Q_RS}")
            a(f"ds_write_b32 v{85+2*j}, v13 offset:{16*tt*Q_RS}")
    a("""
    s_waitcnt lgkmcnt(0)
    s_barrier
    """)
    stamp(a, 4)
    a("s_mul_i32 s37, s3, 40")
    a("s_mov_b32 s35, 0x3e715bef              ; scale = 18^-0.5 (f32)")
    a("s_mov_b32 s43, 0x3fb8aa3b              ; log2(e)")
    a("s_mov_b32 s61, 0x05040100")
    a("s_mov_b32 s62, 0x07060302")
    def rd_row(dst, off):
        for i in range(4):
            a(f"ds_read_b64 v[{dst+2*i}:{dst+2*i+1}], v2 offset:{off+8*i}")
        a(f"ds_read_b32 v{dst+8}, v2 offset:{off+32}")
    KR = [32 + 10 * w for w in range(8)]
    VR = [152 + 10 * w for w in range(8)]
    for half in range(2):
        a(f"""
        v_add_u32 v1, {64*half}, v0
        v_add_u32 v2, 2, v1
        v_mul_u32_u24 v2, {Q_RS}, v2
        v_add_u32 v2, s37, v2
        s_lshl_b32 s38, s20, 7
        v_add_u32 v3, s38, v1
        """)
        rd_row(16, 14 * Q_RS)
        for w in range(8):
            rd_row(KR[w], (14 - 2 * w) * Q_RS + 320)
        for w in range(8):
            rd_row(VR[w], (14 - 2 * w) * Q_RS + 640)
        for w in range(8):
            n_after = (7 - w) * 5 + 40
            a(f"s_waitcnt lgkmcnt({min(n_after, 15)})")
            b = KR[w]
            a(f"v_mov_b32 v{112+w}, 0")
            for i in range(9):
                a(f"v_dot2_f32_bf16 v{112+w}, v{16+i}, v{b+i}, v{112+w}")
        a("v_mov_b32 v5, 0xce6e0000")
        for w in range(0, 8, 2):
            a(f"""
            v_cvt_pk_bf16_f32 v6, v{112+w}, v{113+w}
            v_lshlrev_b32 v{112+w}, 16, v6
            v_and_b32 v{113+w}, 0xffff0000, v6
            v_mul_f32 v{112+w}, s35, v{112+w}
            v_mul_f32 v{113+w}, s35, v{113+w}
            v_cvt_pk_bf16_f32 v6, v{112+w}, v{113+w}
            v_lshlrev_b32 v{112+w}, 16, v6
            v_and_b32 v{113+w}, 0xffff0000, v6
            """)
        for w in range(1, 8):
            a(f"""
            v_cmp_gt_u32 vcc, {2*w}, v3
            s_nop 1
            v_cndmask_b32 v{112+w}, v{112+w}, v5, vcc
            """)
        a("""
        v_max3_f32 v6, v112, v113, v114
        v_max3_f32 v6, v6, v115, v116
        v_max3_f32 v6, v6, v117, v118
        v_max_f32 v6, v6, v119
        """)
        for w in range(8):
            a(f"v_sub_f32 v{112+w}, v{112+w}, v6")
            a(f"v_mul_f32 v{112+w}, s43, v{112+w}")
            a(f"v_exp_f32 v{112+w}, v{112+w}")
        a("""
        s_nop 0
        v_add_f32 v6, v112, v113
        v_add_f32 v7, v114, v115
        v_add_f32 v8, v116, v117
        v_add_f32 v9, v118, v119
        v_add_f32 v6, v6, v7
        v_add_f32 v8, v8, v9
        v_add_f32 v6, v6, v8
        v_rcp_f32 v6, v6
        s_nop 0
        """)
        for w in range(8):
            a(f"v_mul_f32 v{112+w}, v{112+w}, v6")
        for p in range(4):
            a(f"v_cvt_pk_bf16_f32 v{120+p}, v{112+2*p}, v{113+2*p}")
        for d in range(18):
            a(f"v_mov_b32 v{124+d}, 0")
        a("s_waitcnt lgkmcnt(0)")
        for p in range(4):
            b0 = VR[2 * p]
            b1 = VR[2 * p + 1]
            for i in range(9):
                a(f"""
                v_perm_b32 v6, v{b1+i}, v{b0+i}, s61
                v_perm_b32 v7, v{b1+i}, v{b0+i}, s62
                v_dot2_f32_bf16 v{124+2*i}, v6, v{120+p}, v{124+2*i}
                v_dot2_f32_bf16 v{125+2*i}, v7, v{120+p}, v{125+2*i}
                """)
        for i in range(9):
            a(f"v_cvt_pk_bf16_f32 v{232+9*half+i}, v{124+2*i}, v{125+2*i}")
    a("""
    s_barrier
    s_mul_i32 s37, s3, 36
    v_mul_u32_u24 v2, 296, v0
    v_add_u32 v2, s37, v2
    """)
    for half in range(2):
        for i in range(9):
            a(f"ds_write_b32 v2, v{232+9*half+i} offset:{half*64*296 + 4*i}")
    a("""
    v_and_b32 v4, 7, v0
    v_lshrrev_b32 v5, 1, v4                ; g
    v_and_b32 v4, 1, v4                    ; a
    v_lshrrev_b32 v6, 3, v0
    s_lshl_b32 s36, s3, 3
    v_add_u32 v6, s36, v6                  ; trow
    v_lshlrev_b32 v7, 4, v4
    v_lshl_add_u32 v7, v5, 2, v7           ; 16a+4g
    s_and_b32 s36, s21, 1
    s_lshl_b32 s36, s36, 4
    v_subrev_u32 v7, s36, v7
    v_mul_u32_u24 v8, 296, v6
    v_lshl_add_u32 v8, v7, 1, v8
    s_lshl_b32 s36, s20, 7
    v_add_u32 v9, s36, v6
    v_lshlrev_b32 v9, 6, v9
    v_lshl_add_u32 v9, v5, 4, v9
    v_lshl_add_u32 v9, v4, 3, v9
    s_mul_i32 s36, s21, 9
    s_lshr_b32 s36, s36, 1
    s_add_u32 s36, s36, 144
    s_lshl_b32 s36, s36, 17
    v_mov_b32 v10, 0x7f000000
    v_cmp_gt_i32 vcc, 0, v7
    s_nop 1
    v_cndmask_b32 v11, v9, v10, vcc
    v_max_i32 v12, 0, v8
    v_add_u32 v13, 128, v7
    v_cmp_le_i32 vcc, 144, v13
    s_nop 1
    v_cndmask_b32 v13, v9, v10, vcc
    s_waitcnt lgkmcnt(0)
    s_barrier
    """)
    for b in range(5):
        for h in range(2):
            ad = 12 if b == 0 else 8
            a(f"ds_read_b64 v[{16+4*b+2*h}:{17+4*b+2*h}], v{ad} offset:{h*64*296 + 64*b}")
    for b in range(5):
        a(f"s_waitcnt lgkmcnt({8-2*b})")
        vo = 11 if b == 0 else (13 if b == 4 else 9)
        for h in range(2):
            a(f"buffer_store_dwordx2 v[{16+4*b+2*h}:{17+4*b+2*h}], v{vo}, s[16:19], s36 offen offset:{h*4096}" if h*4096 < 4096 else
              f"s_add_u32 s38, s36, 4096\n    buffer_store_dwordx2 v[{16+4*b+2*h}:{17+4*b+2*h}], v{vo}, s[16:19], s38 offen")
        a(f"s_add_u32 s36, s36, {KBS}")
    stamp(a, 5)
    a("s_waitcnt vmcnt(0)")
    stamp(a, 6)
    stamp_dump(a, 7)
    a("s_endpgm")

W_REG = 9216
def gen_g2(a):
    kernel_header(a, "g2_kernel")
    a("""
    s_cmp_ge_u32 s2, 256
    s_cbranch_scc1 G2_END
    s_load_dwordx2 s[4:5], s[0:1], 72      ; ws
    s_load_dwordx2 s[10:11], s[0:1], 0     ; x
    s_load_dwordx2 s[40:41], s[0:1], 56    ; out
    v_lshrrev_b32 v1, 6, v0
    v_and_b32 v0, 63, v0
    s_nop 0
    v_readfirstlane_b32 s3, v1             ; wave
    s_and_b32 s20, s2, 7
    s_lshl_b32 s20, s20, 2
    s_lshr_b32 s21, s2, 3
    s_and_b32 s22, s21, 3
    s_add_u32 s20, s20, s22                ; mi = 4x + (q&3)
    s_lshr_b32 s21, s21, 2                 ; ni
    s_waitcnt lgkmcnt(0)
    """)
    srd(a, 16, 4, HC_BYTES, HC_OFF)
    a(f"s_mul_i32 s36, s21, {W2P_NI}")
    a(f"s_add_u32 s24, s4, {hex(W2P_OFF)}")
    a("s_addc_u32 s25, s5, 0")
    a("s_add_u32 s24, s24, s36")
    a("s_addc_u32 s25, s25, 0")
    a(f"s_mov_b32 s26, {W2P_NI}")
    a("s_mov_b32 s27, 0x00020000")
    srd(a, 44, 10, 2048 * 1152)
    srd(a, 48, 40, 2048 * 1152)
    a(f"""
    v_lshrrev_b32 v10, 2, v0
    v_and_b32 v11, 3, v0
    v_lshrrev_b32 v12, 4, v0
    v_sub_u32 v12, 4, v12
    v_and_b32 v12, 3, v12
    v_xor_b32 v11, v11, v12
    v_lshlrev_b32 v2, 6, v10
    v_lshl_add_u32 v2, v11, 4, v2
    s_lshl_b32 s52, s3, 17
    s_lshl_b32 s36, s20, 12                ; 64*mi*64
    s_add_u32 s52, s52, s36
    s_mul_i32 s53, s3, 4608
    s_mul_i32 s54, s3, {4*W_REG}
    v_lshlrev_b32 v3, 4, v0
    v_add_u32 v7, 4096, v3
    v_mov_b32 v10, 0x7f000000
    v_cmp_gt_u32 vcc, 32, v0
    s_nop 1
    v_cndmask_b32 v7, v10, v7, vcc
    """)
    def dma(buf):
        a(f"""
        s_add_u32 m0, s54, {buf*W_REG}
        s_nop 0
        buffer_load_dwordx4 v2, s[16:19], s52 offen lds
        buffer_load_dwordx4 v2, s[16:19], s52 offen offset:1024 lds
        buffer_load_dwordx4 v2, s[16:19], s52 offen offset:2048 lds
        buffer_load_dwordx4 v2, s[16:19], s52 offen offset:3072 lds
        s_add_u32 m0, s54, {buf*W_REG+4096}
        s_add_u32 s52, s52, {4*KBS}
        buffer_load_dwordx4 v3, s[24:27], s53 offen lds
        buffer_load_dwordx4 v3, s[24:27], s53 offen offset:1024 lds
        buffer_load_dwordx4 v3, s[24:27], s53 offen offset:2048 lds
        buffer_load_dwordx4 v3, s[24:27], s53 offen offset:3072 lds
        s_add_u32 m0, s54, {buf*W_REG+8192}
        s_nop 0
        buffer_load_dwordx4 v7, s[24:27], s53 offen lds
        s_add_u32 s53, s53, {4*4608}
        """)
    stamp(a, 0)
    dma(0)
    a(f"""
    v_and_b32 v10, 15, v0
    v_lshrrev_b32 v11, 2, v10
    v_sub_u32 v11, 4, v11
    v_and_b32 v11, 3, v11
    v_lshrrev_b32 v12, 4, v0
    v_xor_b32 v11, v11, v12
    v_lshlrev_b32 v8, 6, v10
    v_lshl_add_u32 v8, v11, 4, v8
    v_lshrrev_b32 v13, 2, v0
    v_and_b32 v13, 3, v13
    v_lshl_add_u32 v13, v12, 2, v13
    v_lshlrev_b32 v9, 5, v13
    v_and_b32 v14, 3, v0
    v_lshl_add_u32 v9, v14, 3, v9
    v_add_u32 v9, 4096, v9
    v_lshlrev_b32 v6, 4, v13
    v_lshl_add_u32 v6, v14, 3, v6
    v_add_u32 v6, 8192, v6
    v_add_u32 v8, s54, v8
    v_add_u32 v9, s54, v9
    v_add_u32 v6, s54, v6
    """)
    ACC = 64
    for r in range(80):
        a(f"v_mov_b32 v{ACC+r}, 0")
    dma(1)
    dma(2)
    T = [16 + 4 * t for t in range(4)]
    W = [32 + 4 * j for j in range(5)]
    a("s_mov_b32 s34, 0")
    stamp(a, 1)
    a("s_waitcnt vmcnt(18)")
    stamp(a, 2)
    def step(buf):
        bo = buf * W_REG
        a("s_waitcnt vmcnt(18)")
        for tt in range(4):
            a(f"ds_read_b128 v[{T[tt]}:{T[tt]+3}], v8 offset:{bo+1024*tt}")
        for j in range(4):
            a(f"ds_read_b64_tr_b16 v[{W[j]}:{W[j]+1}], v9 offset:{bo+1024*j}")
            a(f"ds_read_b64_tr_b16 v[{W[j]+2}:{W[j]+3}], v9 offset:{bo+1024*j+512}")
        a(f"ds_read_b64_tr_b16 v[{W[4]}:{W[4]+1}], v6 offset:{bo}")
        a(f"ds_read_b64_tr_b16 v[{W[4]+2}:{W[4]+3}], v6 offset:{bo+256}")
        dma((buf + 3) % 4)
        for j in range(5):
            a(f"s_waitcnt lgkmcnt({2*(4-j)})")
            for tt in range(4):
                acc = ACC + (j * 4 + tt) * 4
                a(f"v_mfma_f32_16x16x32_bf16 v[{acc}:{acc+3}], v[{W[j]}:{W[j]+3}], v[{T[tt]}:{T[tt]+3}], v[{acc}:{acc+3}]")
    a.label("G2_LOOP")
    for b in range(4):
        step(b)
    a("""
    s_add_u32 s34, s34, 1
    s_cmp_lt_u32 s34, 10
    s_cbranch_scc1 G2_LOOP
    """)
    step(0)
    a("""
    s_waitcnt vmcnt(0)
    s_barrier
    """)
    stamp(a, 3)
    a("""
    s_mul_i32 s36, s3, 20480
    v_lshlrev_b32 v10, 4, v0
    v_add_u32 v10, s36, v10
    s_nop 7
    """)
    for tile in range(20):
        acc = ACC + tile * 4
        a(f"ds_write_b128 v10, v[{acc}:{acc+3}] offset:{tile*1024}")
    a("""
    v_and_b32 v11, 15, v0
    s_lshl_b32 s36, s20, 6
    s_lshl_b32 s37, s3, 4
    s_add_u32 s36, s36, s37
    v_add_u32 v11, s36, v11
    v_mul_u32_u24 v11, 1152, v11
    v_lshrrev_b32 v12, 4, v0
    v_lshl_add_u32 v11, v12, 3, v11
    s_mul_i32 s36, s21, 144
    v_add_u32 v11, s36, v11
    v_add_u32 v13, 128, v11
    v_mov_b32 v14, 0x7f000000
    v_cmp_gt_u32 vcc, 32, v0
    s_nop 1
    v_cndmask_b32 v13, v14, v13, vcc
    """)
    for j in range(4):
        a(f"buffer_load_dwordx2 v[{16+2*j}:{17+2*j}], v11, s[44:47], 0 offen offset:{32*j}")
    a("buffer_load_dwordx2 v[24:25], v13, s[44:47], 0 offen")
    a("""
    s_waitcnt lgkmcnt(0)
    s_barrier
    s_lshl_b32 s36, s3, 10
    v_lshlrev_b32 v10, 4, v0
    v_add_u32 v10, s36, v10
    """)
    a("v_add_u32 v15, 40960, v10")
    for j in range(5):
        for s_ in range(4):
            r = 64 + (j * 4 + s_) * 4
            ad = 10 if s_ < 2 else 15
            a(f"ds_read_b128 v[{r}:{r+3}], v{ad} offset:{(s_&1)*20480 + j*4096}")
    a("s_waitcnt vmcnt(0)")
    for j in range(5):
        a(f"s_waitcnt lgkmcnt({min(15, 4*(4-j))})")
        r = 64 + j * 16
        for e in range(4):
            a(f"v_add_f32 v{r+e}, v{r+e}, v{r+4+e}")
            a(f"v_add_f32 v{r+8+e}, v{r+8+e}, v{r+12+e}")
            a(f"v_add_f32 v{r+e}, v{r+e}, v{r+8+e}")
        x = 16 + 2 * j
        a(f"""
        v_lshlrev_b32 v30, 16, v{x}
        v_and_b32 v31, 0xffff0000, v{x}
        v_lshlrev_b32 v32, 16, v{x+1}
        v_and_b32 v33, 0xffff0000, v{x+1}
        v_add_f32 v{r}, v{r}, v30
        v_add_f32 v{r+1}, v{r+1}, v31
        v_add_f32 v{r+2}, v{r+2}, v32
        v_add_f32 v{r+3}, v{r+3}, v33
        v_cvt_pk_bf16_f32 v{34+2*j}, v{r}, v{r+1}
        v_cvt_pk_bf16_f32 v{35+2*j}, v{r+2}, v{r+3}
        """)
        if j < 4:
            a(f"buffer_store_dwordx2 v[{34+2*j}:{35+2*j}], v11, s[48:51], 0 offen offset:{32*j}")
        else:
            a(f"buffer_store_dwordx2 v[{34+2*j}:{35+2*j}], v13, s[48:51], 0 offen")
    stamp(a, 4)
    a("s_waitcnt vmcnt(0)")
    stamp(a, 5)
    if os.environ.get("STAMP_G2"): stamp_dump(a, 6)
    a.label("G2_END")
    a("s_endpgm")

def main(path):
    a = A()
    hdr = open("cdna_kernels/" + NAME + ".s.ref").read().split("; Override launch")[0]
    out = hdr
    out += f"; @launch kernel=ln_kernel grid=({1624 if os.environ.get('PREFETCH') else 976},1,1) block=(64,1,1) lds=0\n"
    out += "; @launch kernel=g1_kernel grid=(256,1,1) block=(512,1,1) lds=163840\n"
    out += "; @launch kernel=g2_kernel grid=(256,1,1) block=(256,1,1) lds=147456\n"
    out += '.amdgcn_target "amdgcn-amd-amdhsa--gfx950"\n.text\n'
    gen_ln(a)
    gen_g1(a)
    gen_g2(a)
    out += a.text()
    out += '.section .rodata,"a"\n.p2align 6\n'
    out += kd("ln_kernel", 136)
    out += ".p2align 6\n" + kd("g1_kernel", 256)
    out += ".p2align 6\n" + kd("g2_kernel", 144)
    open(path, "w").write(out)

if __name__ == "__main__":
    main(sys.argv[1] if len(sys.argv) > 1 else "cdna_kernels/" + NAME + ".s")
```

```python
import sys

NAME = "parallel_sum__sliding_local_dilated__glu_gated_reglu__prompt"

XN_OFF = 0
XN_BYTES = 18 * 2048 * 64
HC_OFF = 0x400000
HC_BYTES = 162 * 2048 * 64
W2P_OFF = 0x2000000
W2P_NI = 162 * 4608
WQP_OFF = 0x3000000
WQP_HG = 576 * 864
KBS = 2048 * 64

class A:
    def __init__(self):
        self.l = []
    def __call__(self, s):
        for line in s.strip("\n").split("\n"):
            self.l.append("    " + line.strip())
    def label(self, s):
        self.l.append(s + ":")
    def raw(self, s):
        self.l.append(s)
    def text(self):
        return "\n".join(self.l) + "\n"

def srd(a, d, base, nbytes, off=0):
    if off:
        a(f"s_add_u32 s{d}, s{base}, {hex(off)}")
        a(f"s_addc_u32 s{d+1}, s{base+1}, 0")
    else:
        a(f"s_mov_b32 s{d}, s{base}")
        a(f"s_mov_b32 s{d+1}, s{base+1}")
    a(f"s_mov_b32 s{d+2}, {hex(nbytes)}")
    a(f"s_mov_b32 s{d+3}, 0x00020000")

import os
STAMP = bool(os.environ.get("STAMP"))
def stamp(a, i):
    if STAMP:
        a(f"s_memtime s[{70+2*i}:{71+2*i}]")
def stamp_dump(a, n, wsreg=4):
    if not STAMP: return
    a("s_waitcnt lgkmcnt(0)")
    a(f"s_add_u32 s96, s{wsreg}, 0x8000000")
    a(f"s_addc_u32 s97, s{wsreg+1}, 0")
    a("s_mov_b32 s98, 0x1000000")
    a("s_mov_b32 s99, 0x00020000")
    a("s_lshl_b32 s94, s2, 4")
    a("s_add_u32 s94, s94, s3")
    a("s_lshl_b32 s94, s94, 6")
    a("v_mov_b32 v1, 0")
    for i in range(n):
        a(f"v_mov_b32 v2, s{70+2*i}")
        a(f"buffer_store_dword v2, v1, s[96:99], s94 offen offset:{4*i}")

def kernel_header(a, name):
    a.raw(f".globl {name}")
    a.raw(".p2align 8")
    a.raw(f".type {name},@function")
    a.label(name)

def kd(name, vgpr, sgpr=102):
    acc = (vgpr + 3) // 4 * 4
    return f""".amdhsa_kernel {name}
  .amdhsa_next_free_vgpr {vgpr}
  .amdhsa_next_free_sgpr {sgpr}
  .amdhsa_accum_offset {acc}
  .amdhsa_group_segment_fixed_size 0
  .amdhsa_kernarg_size 80
  .amdhsa_user_sgpr_count 2
  .amdhsa_user_sgpr_kernarg_segment_ptr 1
  .amdhsa_system_sgpr_workgroup_id_x 1
.end_amdhsa_kernel
"""

def gen_ln(a):
    kernel_header(a, "ln_kernel")
    a("""
    s_cmp_ge_u32 s2, 256
    s_cbranch_scc1 RP_ROLE
    s_load_dwordx2 s[4:5], s[0:1], 0
    s_load_dwordx2 s[6:7], s[0:1], 72
    v_lshrrev_b32 v1, 3, v0
    v_and_b32 v2, 7, v0                ; j
    s_lshl_b32 s3, s2, 3
    v_add_u32 v1, s3, v1               ; row
    v_lshrrev_b32 v3, 2, v2            ; j>>2
    v_and_b32 v4, 3, v2                ; g
    s_movk_i32 s16, 1152
    v_mul_lo_u32 v5, v1, s16
    v_lshl_add_u32 v5, v3, 6, v5
    v_lshl_add_u32 v5, v4, 3, v5
    v_lshlrev_b32 v6, 6, v1
    v_lshl_add_u32 v6, v4, 4, v6
    v_lshl_add_u32 v6, v3, 17, v6
    s_waitcnt lgkmcnt(0)
    """)
    srd(a, 8, 4, 2048 * 1152)
    srd(a, 12, 6, XN_BYTES, XN_OFF)
    for i in range(9):
        a(f"buffer_load_dwordx2 v[{8+4*i}:{9+4*i}], v5, s[8:11], 0 offen offset:{128*i}")
        a(f"buffer_load_dwordx2 v[{10+4*i}:{11+4*i}], v5, s[8:11], 0 offen offset:{128*i+32}")
    a("v_mov_b32 v50, 0")
    a("v_mov_b32 v51, 0")
    for i in range(9):
        a(f"s_waitcnt vmcnt({2*(8-i)})")
        for d in range(4):
            src = 8 + 4 * i + d
            lo = 64 + 8 * i + 2 * d
            a(f"v_lshlrev_b32 v{lo}, 16, v{src}")
            a(f"v_and_b32 v{lo+1}, 0xffff0000, v{src}")
            a(f"v_add_f32 v50, v50, v{lo}")
            a(f"v_add_f32 v51, v51, v{lo+1}")
    a("v_add_f32 v50, v50, v51")
    def red8(r):
        a(f"""
        s_nop 1
        v_add_f32_dpp v{r}, v{r}, v{r} quad_perm:[1,0,3,2] row_mask:0xf bank_mask:0xf
        s_nop 1
        v_add_f32_dpp v{r}, v{r}, v{r} quad_perm:[2,3,0,1] row_mask:0xf bank_mask:0xf
        s_nop 1
        v_add_f32_dpp v{r}, v{r}, v{r} row_half_mirror row_mask:0xf bank_mask:0xf
        """)
    red8(50)
    a("v_mul_f32 v50, 0x3ae38e39, v50     ; /576 -> mean (f32)")
    a("v_mov_b32 v52, 0")
    a("v_mov_b32 v53, 0")
    for e in range(0, 72, 2):
        a(f"v_sub_f32 v54, v{64+e}, v50")
        a(f"v_sub_f32 v55, v{65+e}, v50")
        a(f"v_fmac_f32 v52, v54, v54")
        a(f"v_fmac_f32 v53, v55, v55")
    a("v_add_f32 v52, v52, v53")
    red8(52)
    a("""
    v_mul_f32 v52, 0x3ae38e39, v52     ; var f32
    v_cvt_pk_bf16_f32 v54, v50, v52
    v_lshlrev_b32 v50, 16, v54         ; mean_b
    v_and_b32 v52, 0xffff0000, v54     ; var_b
    v_add_f32 v52, 0x3727c5ac, v52     ; + 1e-5
    v_cvt_pk_bf16_f32 v54, v52, v52
    v_lshlrev_b32 v52, 16, v54
    v_sqrt_f32 v52, v52
    s_nop 0
    v_cvt_pk_bf16_f32 v54, v52, v52
    v_lshlrev_b32 v52, 16, v54
    v_rcp_f32 v53, v52                 ; rinv
    s_nop 0
    """)
    for i in range(9):
        for d in range(4):
            lo = 64 + 8 * i + 2 * d
            dst = 8 + 4 * i + d
            a(f"""
            v_sub_f32 v54, v{lo}, v50
            v_sub_f32 v55, v{lo+1}, v50
            v_cvt_pk_bf16_f32 v56, v54, v55
            v_lshlrev_b32 v54, 16, v56
            v_and_b32 v55, 0xffff0000, v56
            v_mul_f32 v56, v54, v53
            v_mul_f32 v57, v55, v53
            v_fma_f32 v58, -v56, v52, v54
            v_fma_f32 v59, -v57, v52, v55
            v_fmac_f32 v56, v58, v53
            v_fmac_f32 v57, v59, v53
            v_cvt_pk_bf16_f32 v{dst}, v56, v57
            """)
        a(f"s_mov_b32 s17, {2*KBS*i}")
        a(f"buffer_store_dwordx4 v[{8+4*i}:{11+4*i}], v6, s[12:15], s17 offen")
    a.label("LN_END")
    a("s_endpgm")
    a.label("RP_ROLE")
    if os.environ.get("PREFETCH"):
        a("""
        s_cmp_ge_u32 s2, 1624
        s_cbranch_scc1 LN_END
        s_cmp_lt_u32 s2, 976
        s_cbranch_scc1 RP_ROLE2
        s_load_dwordx2 s[4:5], s[0:1], 32      ; W_gate
        s_load_dwordx2 s[6:7], s[0:1], 40      ; W_up
        s_sub_u32 s20, s2, 976                 ; 0..647
        s_waitcnt lgkmcnt(0)
        s_cmp_ge_u32 s20, 324
        s_cselect_b32 s12, s6, s4
        s_cselect_b32 s13, s7, s5
        s_mov_b32 s14, 5308416
        s_mov_b32 s15, 0x00020000
        s_sub_u32 s21, s20, 324
        s_cmp_ge_u32 s20, 324
        s_cselect_b32 s21, s21, s20
        s_lshl_b32 s21, s21, 14
        v_lshlrev_b32 v1, 4, v0
        """)
        for i in range(16):
            a(f"buffer_load_dwordx4 v[{8+4*i}:{11+4*i}], v1, s[12:15], s21 offen offset:{(1024*i)%4096}")
            if i % 4 == 3:
                a("s_add_u32 s21, s21, 4096")
        a("s_waitcnt vmcnt(0)")
        a("s_endpgm")
        a.label("RP_ROLE2")
    a("""
    s_cmp_ge_u32 s2, 976
    s_cbranch_scc1 LN_END
    s_load_dwordx2 s[4:5], s[0:1], 72      ; ws
    s_load_dwordx2 s[6:7], s[0:1], 48      ; W_down
    s_load_dwordx2 s[8:9], s[0:1], 16      ; wo
    s_load_dwordx2 s[10:11], s[0:1], 8     ; wqkv
    s_cmp_ge_u32 s2, 904
    s_cbranch_scc1 RPQ_ROLE
    s_sub_u32 s20, s2, 256
    s_lshr_b32 s21, s20, 2                 ; kb
    s_and_b32 s22, s20, 3
    s_lshl_b32 s22, s22, 1
    s_waitcnt lgkmcnt(0)
    s_sub_u32 s23, s21, 144
    s_cmp_ge_u32 s21, 144
    s_cselect_b32 s12, s8, s6
    s_cselect_b32 s13, s9, s7
    s_mov_b32 s14, 5308416
    s_mov_b32 s15, 0x00020000
    s_cselect_b32 s23, s23, s21
    s_mul_i32 s23, s23, 36864              ; 32 rows * 1152
    s_mul_i32 s24, s22, 144
    s_add_u32 s23, s23, s24
    s_mul_i32 s25, s21, 4608
    """)
    srd(a, 16, 4, 8 * W2P_NI, W2P_OFF)
    a(f"""
    s_mul_i32 s24, s22, {W2P_NI}
    s_add_u32 s25, s25, s24
    v_lshrrev_b32 v1, 1, v0
    v_mul_u32_u24 v1, 1152, v1
    v_and_b32 v2, 1, v0
    v_lshl_add_u32 v1, v2, 4, v1
    v_mul_u32_u24 v2, 1152, v0
    v_add_u32 v2, 128, v2
    v_lshlrev_b32 v3, 4, v0
    v_add_u32 v4, 4096, v3
    v_mov_b32 v5, 0x7f000000
    v_cmp_gt_u32 vcc, 32, v0
    s_nop 1
    v_cndmask_b32 v2, v5, v2, vcc
    v_cndmask_b32 v4, v5, v4, vcc
    s_add_u32 s26, s23, 144
    s_add_u32 s27, s25, {W2P_NI}
    """)
    for jb, so in ((0, 23), (1, 26)):
        for n in range(4):
            a(f"buffer_load_dwordx4 v[{8+20*jb+4*n}:{11+20*jb+4*n}], v1, s[12:15], s{so} offen offset:{32*n}")
        a(f"buffer_load_dwordx4 v[{24+20*jb}:{27+20*jb}], v2, s[12:15], s{so} offen")
    for jb, so in ((0, 25), (1, 27)):
        for n in range(4):
            a("s_waitcnt vmcnt(9)")
            a(f"buffer_store_dwordx4 v[{8+20*jb+4*n}:{11+20*jb+4*n}], v3, s[16:19], s{so} offen offset:{1024*n}")
        a("s_waitcnt vmcnt(9)")
        a(f"buffer_store_dwordx4 v[{24+20*jb}:{27+20*jb}], v4, s[16:19], s{so} offen")
    a("s_endpgm")
    a.label("RPQ_ROLE")
    a("""
    s_sub_u32 s20, s2, 904                 ; 0..71 : rows 8*s20..
    s_lshl_b32 s20, s20, 3
    s_waitcnt lgkmcnt(0)
    """)
    srd(a, 12, 10, 576 * 3456)
    srd(a, 16, 4, 4 * WQP_HG, WQP_OFF)
    a("""
    s_mul_i32 s21, s20, 3456
    s_mul_i32 s22, s20, 864
    v_lshlrev_b32 v1, 4, v0
    """)
    for i in range(27):
        a(f"buffer_load_dwordx4 v[{8+4*i}:{11+4*i}], v1, s[12:15], s21 offen offset:{(1024*i)%4096}")
        if i % 4 == 3:
            a("s_add_u32 s21, s21, 4096")
    for i in range(27):
        a(f"""
        v_add_u32 v2, {64*i}, v0
        v_mul_u32_u24 v3, 1214, v2
        v_lshrrev_b32 v3, 18, v3               ; row = P/216
        v_mul_u32_u24 v4, 216, v3
        v_sub_u32 v4, v2, v4                   ; u
        v_mul_u32_u24 v5, 911, v4
        v_lshrrev_b32 v5, 16, v5               ; seg
        v_mul_u32_u24 v6, 72, v5
        v_sub_u32 v6, v4, v6                   ; w
        v_mul_u32_u24 v7, 3641, v6
        v_lshrrev_b32 v7, 16, v7               ; hg
        v_mul_u32_u24 v120, 18, v7
        v_sub_u32 v6, v6, v120                 ; c
        v_mul_u32_u24 v5, 18, v5
        v_add_u32 v6, v6, v5
        v_mul_u32_u24 v3, 864, v3
        v_lshl_add_u32 v3, v6, 4, v3
        s_mov_b32 s24, {WQP_HG}
        v_mul_lo_u32 v7, v7, s24
        v_add_u32 v3, v3, v7
        s_waitcnt vmcnt(26)
        buffer_store_dwordx4 v[{8+4*i}:{11+4*i}], v3, s[16:19], s22 offen
        """)
    a("s_endpgm")

G_STAGE = 40960
Q_STAGE = 37888
Q_RS = 1000

def gen_g1(a):
    kernel_header(a, "g1_kernel")
    a("""
    s_cmp_ge_u32 s2, 256
    s_cbranch_scc1 G1_END
    s_load_dwordx2 s[4:5], s[0:1], 72      ; ws
    s_load_dwordx2 s[6:7], s[0:1], 32      ; W_gate
    s_load_dwordx2 s[8:9], s[0:1], 40      ; W_up
    s_load_dwordx2 s[10:11], s[0:1], 8     ; wqkv
    v_lshrrev_b32 v1, 6, v0
    v_and_b32 v0, 63, v0                   ; lane
    s_nop 0
    v_readfirstlane_b32 s3, v1
    s_waitcnt lgkmcnt(0)
    """)
    srd(a, 12, 4, XN_BYTES, XN_OFF)
    srd(a, 16, 4, HC_BYTES, HC_OFF)
    a("""
    s_cmp_ge_u32 s2, 192
    s_cbranch_scc1 QKV_ROLE
    """)
    import os
    if os.environ.get("SKIP_GU"): a("s_endpgm")
    gen_g1_gateup(a)
    a.label("QKV_ROLE")
    if os.environ.get("SKIP_QKV"): a("s_endpgm")
    gen_g1_qkv(a)
    a.label("G1_END")
    a("s_endpgm")

def gen_g1_gateup(a):
    a("""
    s_lshr_b32 s20, s2, 3
    s_and_b32 s20, s20, 7                  ; mi
    s_and_b32 s21, s2, 7
    s_mul_i32 s21, s21, 3
    s_lshr_b32 s22, s2, 6
    s_add_u32 s21, s21, s22                ; fi
    s_lshr_b32 s22, s3, 1                  ; tw = w>>1  (0..3)
    s_and_b32 s23, s3, 1                   ; fw = w&1
    """)
    a("""
    s_cmp_ge_u32 s3, 4
    s_cselect_b32 s24, s8, s6
    s_cselect_b32 s25, s9, s7
    s_mov_b32 s26, 5308416
    s_mov_b32 s27, 0x00020000
    """)
    a("""
    s_lshl_b32 s28, s20, 14                ; 256*mi*64
    s_lshl_b32 s36, s3, 11                 ; 2w*16 rows*64B = w*2048
    s_add_u32 s28, s28, s36
    s_mov_b32 s30, s36
    s_and_b32 s36, s3, 3                   ; a
    s_mul_i32 s29, s36, 73728              ; 8a*9216
    s_mul_i32 s37, s21, 384
    s_add_u32 s29, s29, s37
    s_mul_i32 s31, s36, 3072
    s_lshr_b32 s37, s3, 2
    s_mul_i32 s37, s37, 12288
    s_add_u32 s31, s31, s37
    s_add_u32 s31, s31, 16384
    """)
    a("""
    v_lshrrev_b32 v10, 2, v0
    v_and_b32 v11, 3, v0
    v_lshrrev_b32 v12, 4, v0
    v_xor_b32 v11, v11, v12
    v_lshlrev_b32 v2, 6, v10
    v_lshl_add_u32 v2, v11, 4, v2
    """)
    for b in range(3):
        a(f"""
        v_add_u32 v10, {64*b}, v0
        v_mul_u32_u24 v11, 2731, v10
        v_lshrrev_b32 v11, 16, v11             ; k = P/24
        v_mul_u32_u24 v12, 24, v11
        v_sub_u32 v12, v10, v12                ; u'
        v_lshrrev_b32 v13, 1, v11
        v_and_b32 v13, 1, v13
        v_lshlrev_b32 v13, 2, v13
        v_xor_b32 v12, v12, v13                ; u
        v_mul_u32_u24 v11, 9216, v11
        v_lshl_add_u32 v{3+b}, v12, 4, v11
        """)
        if b:
            a(f"v_subrev_u32 v{3+b}, {1024*b}, v{3+b}")
    a("""
    v_and_b32 v10, 31, v0
    s_lshl_b32 s36, s22, 6
    v_add_u32 v10, s36, v10
    v_lshrrev_b32 v11, 5, v0               ; hh
    v_lshrrev_b32 v12, 2, v0
    v_and_b32 v12, 3, v12                  ; r == (l>>2)&3
    v_xor_b32 v13, v11, v12
    v_lshlrev_b32 v6, 6, v10
    v_lshl_add_u32 v6, v13, 4, v6
    v_xor_b32 v7, 32, v6
    """)
    a("""
    v_lshrrev_b32 v13, 4, v0
    v_and_b32 v13, 1, v13
    v_and_b32 v14, 3, v0
    v_lshl_add_u32 v13, v13, 2, v14        ; c
    v_and_b32 v14, 1, v13                  ; hho
    v_lshrrev_b32 v15, 1, v13              ; q
    v_lshrrev_b32 v16, 1, v15              ; q>>1
    v_and_b32 v15, 1, v15                  ; q&1
    v_lshl_add_u32 v14, v14, 1, v16
    v_lshl_add_u32 v14, v15, 2, v14        ; e
    v_lshl_add_u32 v15, v11, 2, v12        ; 4hh + r
    v_mul_u32_u24 v15, 384, v15
    v_lshl_add_u32 v15, v14, 3, v15
    s_mul_i32 s36, s23, 192
    s_add_u32 s36, s36, 16384
    v_add_u32 v15, s36, v15                ; const
    v_lshrrev_b32 v16, 1, v12              ; b
    v_lshlrev_b32 v16, 6, v16              ; 64b
    s_cmp_eq_u32 s23, 0
    s_cselect_b32 s36, 1, -1
    v_mul_lo_u32 v16, v16, s36
    v_add_u32 v8, v15, v16
    v_sub_u32 v9, v15, v16
    """)
    def dma_parts(bufreg):
        return [
        f"""s_add_u32 m0, s{bufreg}, s30
        s_nop 0
        buffer_load_dwordx4 v2, s[12:15], s28 offen lds""",
        f"""buffer_load_dwordx4 v2, s[12:15], s28 offen offset:1024 lds
        s_add_u32 s28, s28, {KBS}""",
        f"""s_add_u32 m0, s{bufreg}, s31
        s_nop 0
        buffer_load_dwordx4 v3, s[24:27], s29 offen lds""",
        f"""buffer_load_dwordx4 v4, s[24:27], s29 offen offset:1024 lds""",
        f"""buffer_load_dwordx4 v5, s[24:27], s29 offen offset:2048 lds
        s_add_u32 s29, s29, {32*9216}"""]
    def dma(bufreg):
        for p in dma_parts(bufreg):
            a(p)
    stamp(a, 0)
    a("s_mov_b32 s32, 0")
    dma(32)
    ACC = 64
    for r in range(192):
        a(f"v_mov_b32 v{ACC+r}, 0")
    for st in range(1, 3):
        a(f"s_mov_b32 s32, {st*G_STAGE}")
        dma(32)
    a(f"s_mov_b32 s32, {3*G_STAGE}")
    a("s_mov_b32 s33, 0")
    TB = [40, 48]
    WB = [16, 20, 24, 28, 32, 36]
    def set_addrs():
        a("""
        v_add_u32 v10, s33, v6
        v_add_u32 v11, s33, v7
        v_add_u32 v12, s33, v8
        v_add_u32 v13, s33, v9
        """)
    def rd_tok(buf, ks):
        ad = 10 + ks
        a(f"ds_read_b128 v[{TB[buf]}:{TB[buf]+3}], v{ad}")
        a(f"ds_read_b128 v[{TB[buf]+4}:{TB[buf]+7}], v{ad} offset:2048")
    def rd_w(j, ks):
        jj = j % 3
        mat = j // 3
        ad = 12 + (jj & 1)
        off = 64 * jj + 3072 * ks + 12288 * mat
        w = WB[j]
        a(f"ds_read_b64_tr_b16 v[{w}:{w+1}], v{ad} offset:{off}")
        a(f"ds_read_b64_tr_b16 v[{w+2}:{w+3}], v{ad} offset:{off+6144}")
    def mfma(j, buf):
        w = WB[j]
        for tt in range(2):
            acc = ACC + (j * 2 + tt) * 16
            t = TB[buf] + 4 * tt
            a(f"v_mfma_f32_32x32x16_bf16 v[{acc}:{acc+15}], v[{w}:{w+3}], v[{t}:{t+3}], v[{acc}:{acc+15}]")
    stamp(a, 1)
    a("s_waitcnt vmcnt(10)")
    a("s_barrier")
    stamp(a, 2)
    set_addrs()
    rd_tok(0, 0)
    for j in range(6):
        rd_w(j, 0)
    a("s_mov_b32 s34, 0")
    if os.environ.get("PRIO"):
        a("s_cmp_ge_u32 s3, 4")
        a("s_cbranch_scc0 GU_NP")
        a("s_setprio 1")
        a.label("GU_NP")
    a.label("GU_LOOP")
    rd_tok(1, 1)
    for j in range(6):
        a("s_waitcnt lgkmcnt(12)")
        mfma(j, 0)
        rd_w(j, 1)
    a("s_waitcnt vmcnt(5)")
    a("s_barrier")
    a(f"""
    s_add_u32 s33, s33, {G_STAGE}
    s_cmp_eq_u32 s33, {4*G_STAGE}
    s_cselect_b32 s33, 0, s33
    """)
    set_addrs()
    rd_tok(0, 0)
    parts = dma_parts(32)
    for j in range(6):
        a("s_waitcnt lgkmcnt(12)")
        mfma(j, 1)
        rd_w(j, 0)
        if j < 5:
            a(parts[j])
    a(f"""
    s_add_u32 s32, s32, {G_STAGE}
    s_cmp_eq_u32 s32, {4*G_STAGE}
    s_cselect_b32 s32, 0, s32
    """)
    a("""
    s_add_u32 s34, s34, 1
    s_cmp_lt_u32 s34, 18
    s_cbranch_scc1 GU_LOOP
    """)
    a("""
    s_waitcnt lgkmcnt(0)
    s_nop 15
    """)
    stamp(a, 3)
    a("""
    v_and_b32 v10, 31, v0
    s_lshl_b32 s36, s20, 8
    s_lshl_b32 s37, s22, 6
    s_add_u32 s36, s36, s37
    v_add_u32 v10, s36, v10
    v_lshlrev_b32 v10, 6, v10
    v_lshrrev_b32 v11, 5, v0
    v_lshl_add_u32 v10, v11, 5, v10
    s_mul_i32 s36, s21, 6
    s_mul_i32 s37, s23, 3
    s_add_u32 s36, s36, s37
    s_lshl_b32 s36, s36, 17                ; kb*131072
    """)
    for j in range(3):
        for tt in range(2):
            g = ACC + (j * 2 + tt) * 16
            u = ACC + ((j + 3) * 2 + tt) * 16
            o = 16 + 8 * tt
            for p in range(8):
                a(f"""
                v_cvt_pk_bf16_f32 v32, v{g+2*p}, v{g+2*p+1}
                v_cvt_pk_bf16_f32 v33, v{u+2*p}, v{u+2*p+1}
                v_pk_max_i16 v32, v32, 0
                v_lshlrev_b32 v34, 16, v32
                v_and_b32 v35, 0xffff0000, v32
                v_lshlrev_b32 v36, 16, v33
                v_and_b32 v37, 0xffff0000, v33
                v_mul_f32 v34, v34, v36
                v_mul_f32 v35, v35, v37
                v_cvt_pk_bf16_f32 v{o+p}, v34, v35
                """)
            HF = os.environ.get("HFLAG", "")
            a(f"buffer_store_dwordx4 v[{o}:{o+3}], v10, s[16:19], s36 offen offset:{2048*tt} {HF}")
            a(f"buffer_store_dwordx4 v[{o+4}:{o+7}], v10, s[16:19], s36 offen offset:{2048*tt+16} {HF}")
        a(f"s_add_u32 s36, s36, {KBS}")
    stamp(a, 4)
    a("s_waitcnt vmcnt(0)")
    stamp(a, 5)
    stamp_dump(a, 6)
    a("s_endpgm")

def gen_g1_qkv(a):
    a("""
    s_sub_u32 s20, s2, 192
    s_and_b32 s21, s20, 3                  ; hg
    s_lshr_b32 s22, s20, 3
    s_lshl_b32 s22, s22, 1
    s_lshr_b32 s23, s20, 2
    s_and_b32 s23, s23, 1
    s_add_u32 s20, s22, s23                ; mi (0..15)
    s_lshr_b32 s22, s3, 2                  ; th = w>>2
    s_and_b32 s23, s3, 3                   ; cg = w&3
    """)
    a(f"s_mul_i32 s36, s21, {WQP_HG}")
    a(f"s_add_u32 s24, s4, {hex(WQP_OFF)}")
    a("s_addc_u32 s25, s5, 0")
    a("s_add_u32 s24, s24, s36")
    a("s_addc_u32 s25, s25, 0")
    a(f"s_mov_b32 s26, {WQP_HG}")
    a("s_mov_b32 s27, 0x00020000")
    for i in range(4):
        a(f"s_lshl_b32 s36, s3, 10")
        a(f"s_add_u32 s36, s36, {8192*i}")
        a(f"v_lshlrev_b32 v{2+i}, 4, v0")
        a(f"v_add_u32 v{2+i}, s36, v{2+i}")
    a("""
    v_lshrrev_b32 v10, 2, v0
    v_and_b32 v11, 3, v0
    v_lshrrev_b32 v12, 4, v0
    v_sub_u32 v12, 4, v12
    v_and_b32 v12, 3, v12
    v_xor_b32 v11, v11, v12
    v_lshlrev_b32 v6, 6, v10
    v_lshl_add_u32 v6, v11, 4, v6
    """)
    a("""
    s_mov_b32 s44, 0
    s_lshl_b32 s36, s20, 7                 ; 128*mi
    s_sub_u32 s37, s3, 3                   ; w-3
    s_lshl_b32 s37, s37, 5                 ; 32*(w-3) rows = 16*(2(w-3))
    s_add_u32 s36, s36, s37
    s_sub_u32 s36, s36, 16
    s_max_i32 s38, s36, 0
    s_lshl_b32 s38, s38, 6
    s_add_u32 s39, s36, 16
    s_lshl_b32 s39, s39, 6
    s_cmp_lt_u32 s3, 3
    s_cselect_b32 s28, s24, s12
    s_cselect_b32 s29, s25, s13
    s_cselect_b32 s30, s26, s14
    s_mov_b32 s31, 0x00020000
    s_cselect_b32 s45, s44, s38
    s_cselect_b32 s46, 0x7f000000, s39
    s_mov_b32 s47, 131072
    s_cselect_b32 s47, 27648, s47
    s_lshl_b32 s48, s3, 10
    s_add_u32 s48, s48, 10240
    s_add_u32 s37, s48, 24576
    s_sub_u32 s36, s3, 3
    s_lshl_b32 s36, s36, 11
    s_add_u32 s50, s36, 1024
    s_cmp_lt_u32 s3, 3
    s_cselect_b32 s49, s37, s36
    """)
    a(f"""
    s_cmp_lt_u32 s3, 3
    s_cselect_b32 s51, 1, 0                ; flag w<3
    v_mov_b32 v7, v6
    s_cmp_lt_u32 s3, 3
    s_cbranch_scc0 QK_S3TOK
    v_mov_b32 v7, v5
    """)
    a.label("QK_S3TOK")
    def dma_parts(bufreg):
        return [
        f"""s_add_u32 m0, s{bufreg}, s48
        s_nop 0
        buffer_load_dwordx4 v2, s[24:27], s44 offen lds""",
        f"""s_add_u32 m0, m0, 8192
        s_nop 0
        buffer_load_dwordx4 v3, s[24:27], s44 offen lds""",
        f"""s_add_u32 m0, m0, 8192
        s_nop 0
        buffer_load_dwordx4 v4, s[24:27], s44 offen lds""",
        f"""s_add_u32 m0, s{bufreg}, s49
        s_add_u32 s44, s44, 27648
        buffer_load_dwordx4 v7, s[28:31], s45 offen lds""",
        f"""s_add_u32 m0, s{bufreg}, s50
        s_cmp_eq_u32 s51, 1
        s_cselect_b32 m0, {4*Q_STAGE}, m0
        s_add_u32 s45, s45, s47
        buffer_load_dwordx4 v6, s[12:15], s46 offen lds
        s_add_u32 s46, s46, 131072"""]
    def dma(bufreg):
        for p in dma_parts(bufreg):
            a(p)
    stamp(a, 0)
    a("s_mov_b32 s32, 0")
    dma(32)
    a("""
    v_and_b32 v10, 15, v0
    v_lshrrev_b32 v11, 2, v10
    v_sub_u32 v11, 4, v11
    v_and_b32 v11, 3, v11
    v_lshrrev_b32 v12, 4, v0               ; g
    v_xor_b32 v11, v11, v12
    s_mul_i32 s36, s22, 80
    v_add_u32 v10, s36, v10
    v_lshlrev_b32 v8, 6, v10
    v_lshl_add_u32 v8, v11, 4, v8
    v_lshrrev_b32 v13, 2, v0
    v_and_b32 v13, 3, v13                  ; r
    v_lshl_add_u32 v13, v12, 2, v13        ; 4g+r
    v_mul_u32_u24 v9, 864, v13
    v_and_b32 v14, 3, v0
    v_lshl_add_u32 v9, v14, 3, v9
    s_mul_i32 s36, s23, 224
    s_add_u32 s36, s36, 10240
    v_add_u32 v9, s36, v9
    """)
    ACC = 100
    for r in range(140):
        a(f"v_mov_b32 v{ACC+r}, 0")
    a(f"""
    v_and_b32 v10, 15, v0
    s_mul_i32 s36, s22, 80
    v_add_u32 v10, s36, v10
    v_mul_u32_u24 v10, {Q_RS}, v10
    v_lshrrev_b32 v11, 4, v0
    v_lshlrev_b32 v11, 2, v11
    s_mul_i32 s36, s23, 112
    v_add_u32 v11, s36, v11                ; c base (j=0,e=0)
    """)
    for j in range(7):
        for e in range(2):
            d = 84 + 2 * j + e
            a(f"""
            v_add_u32 v12, {16*j+2*e}, v11
            v_mul_u32_u24 v13, 456, v12
            v_lshrrev_b32 v13, 16, v13             ; seg = c/144
            v_mul_u32_u24 v14, 144, v13
            v_sub_u32 v12, v12, v14
            v_mul_u32_u24 v14, 3641, v12
            v_lshrrev_b32 v14, 16, v14             ; hd
            v_mul_u32_u24 v15, 18, v14
            v_sub_u32 v12, v12, v15                ; d
            v_mul_u32_u24 v13, 320, v13
            v_mul_u32_u24 v14, 40, v14
            v_add3_u32 v13, v13, v14, v10
            v_lshl_add_u32 v{d}, v12, 1, v13
            """)
    for st in range(1, 3):
        a(f"s_mov_b32 s32, {st*Q_STAGE}")
        dma(32)
    a(f"s_mov_b32 s32, {3*Q_STAGE}")
    a("s_mov_b32 s33, 0")
    TB = [16, 36]
    WB = [56 + 4 * j for j in range(7)]
    def rd_tok(buf, tt):
        t = TB[buf] + 4 * tt
        a(f"ds_read_b128 v[{t}:{t+3}], v10 offset:{1024*tt}")
    def rd_w(j, ad):
        w = WB[j]
        a(f"ds_read_b64_tr_b16 v[{w}:{w+1}], v{ad} offset:{32*j}")
        a(f"ds_read_b64_tr_b16 v[{w+2}:{w+3}], v{ad} offset:{32*j+16*864}")
    lab = [0]
    def mfma(j, buf):
        w = WB[j]
        for tt in range(5):
            acc = ACC + (j * 5 + tt) * 4
            t = TB[buf] + 4 * tt
            if tt == 4:
                lab[0] += 1
                a("s_cmp_eq_u32 s22, 1")
                a(f"s_cbranch_scc1 QK_SK{lab[0]}")
            a(f"v_mfma_f32_16x16x32_bf16 v[{acc}:{acc+3}], v[{w}:{w+3}], v[{t}:{t+3}], v[{acc}:{acc+3}]")
            if tt == 4:
                a.label(f"QK_SK{lab[0]}")
    stamp(a, 1)
    a("s_waitcnt vmcnt(10)")
    a("s_barrier")
    stamp(a, 2)
    a("v_add_u32 v10, s33, v8")
    a("v_add_u32 v12, s33, v9")
    for tt in range(5):
        rd_tok(0, tt)
    PD = int(os.environ.get("PD", "3"))
    for j in range(PD):
        rd_w(j, 12)
    a("s_mov_b32 s34, 0")
    if os.environ.get("PRIO"):
        a("s_cmp_lt_u32 s3, 4")
        a("s_cbranch_scc0 QK_NP")
        a("s_setprio 1")
        a.label("QK_NP")
    a.label("QK_LOOP")
    for half in range(2):
        a("s_waitcnt vmcnt(5)")
        a("s_barrier")
        parts = dma_parts(32)
        a(f"""
        s_add_u32 s33, s33, {Q_STAGE}
        s_cmp_eq_u32 s33, {4*Q_STAGE}
        s_cselect_b32 s33, 0, s33
        v_mov_b32 v11, v12
        v_add_u32 v10, s33, v8
        v_add_u32 v12, s33, v9
        """)
        q = [f"W{j}{h}" for j in range(PD) for h in "ab"]
        for j in range(7):
            idx = q.index(f"W{j}b")
            remain = len(q) - idx - 1
            a(f"s_waitcnt lgkmcnt({remain})")
            q = q[idx + 1:]
            mfma(j, half)
            if j < 5:
                rd_tok(1 - half, j); q.append(f"T{j}")
            jn = j + PD
            if jn < 7:
                rd_w(jn, 11); q += [f"W{jn}a", f"W{jn}b"]
            else:
                rd_w(jn - 7, 12); q += [f"n{jn-7}a", f"n{jn-7}b"]
            assert len(q) <= 15, len(q)
            if j < 5:
                a(parts[j])
        a(f"""
        s_add_u32 s32, s32, {Q_STAGE}
        s_cmp_eq_u32 s32, {4*Q_STAGE}
        s_cselect_b32 s32, 0, s32
        """)
        assert [x for x in q if x[0]=="n"] == [f"n{j}{h}" for j in range(PD) for h in "ab"], q
        assert q.index("n0a") > max([q.index(x) for x in q if x[0]=="T"] + [-1]) or PD != 3, q
    a("""
    s_add_u32 s34, s34, 1
    s_cmp_lt_u32 s34, 9
    s_cbranch_scc1 QK_LOOP
    """)
    stamp(a, 3)
    a("""
    s_waitcnt vmcnt(0) lgkmcnt(0)
    s_barrier
    """)
    for tt in range(5):
        for j in range(7):
            acc = ACC + (j * 5 + tt) * 4
            a(f"v_cvt_pk_bf16_f32 v12, v{acc}, v{acc+1}")
            a(f"v_cvt_pk_bf16_f32 v13, v{acc+2}, v{acc+3}")
            a(f"ds_write_b32 v{84+2*j}, v12 offset:{16*tt*Q_RS}")
            a(f"ds_write_b32 v{85+2*j}, v13 offset:{16*tt*Q_RS}")
    a("""
    s_waitcnt lgkmcnt(0)
    s_barrier
    """)
    stamp(a, 4)
    a("s_mul_i32 s37, s3, 40")
    a("s_mov_b32 s35, 0x3e715bef              ; scale = 18^-0.5 (f32)")
    a("s_mov_b32 s43, 0x3fb8aa3b              ; log2(e)")
    a("s_mov_b32 s61, 0x05040100")
    a("s_mov_b32 s62, 0x07060302")
    def rd_row(dst, off):
        for i in range(4):
            a(f"ds_read_b64 v[{dst+2*i}:{dst+2*i+1}], v2 offset:{off+8*i}")
        a(f"ds_read_b32 v{dst+8}, v2 offset:{off+32}")
    KR = [32 + 10 * w for w in range(8)]
    VR = [152 + 10 * w for w in range(8)]
    for half in range(2):
        a(f"""
        v_add_u32 v1, {64*half}, v0
        v_add_u32 v2, 2, v1
        v_mul_u32_u24 v2, {Q_RS}, v2
        v_add_u32 v2, s37, v2
        s_lshl_b32 s38, s20, 7
        v_add_u32 v3, s38, v1
        """)
        rd_row(16, 14 * Q_RS)
        for w in range(8):
            rd_row(KR[w], (14 - 2 * w) * Q_RS + 320)
        for w in range(8):
            rd_row(VR[w], (14 - 2 * w) * Q_RS + 640)
        for w in range(8):
            n_after = (7 - w) * 5 + 40
            a(f"s_waitcnt lgkmcnt({min(n_after, 15)})")
            b = KR[w]
            a(f"v_mov_b32 v{112+w}, 0")
            for i in range(9):
                a(f"v_dot2_f32_bf16 v{112+w}, v{16+i}, v{b+i}, v{112+w}")
        a("v_mov_b32 v5, 0xce6e0000")
        for w in range(0, 8, 2):
            a(f"""
            v_cvt_pk_bf16_f32 v6, v{112+w}, v{113+w}
            v_lshlrev_b32 v{112+w}, 16, v6
            v_and_b32 v{113+w}, 0xffff0000, v6
            v_mul_f32 v{112+w}, s35, v{112+w}
            v_mul_f32 v{113+w}, s35, v{113+w}
            v_cvt_pk_bf16_f32 v6, v{112+w}, v{113+w}
            v_lshlrev_b32 v{112+w}, 16, v6
            v_and_b32 v{113+w}, 0xffff0000, v6
            """)
        for w in range(1, 8):
            a(f"""
            v_cmp_gt_u32 vcc, {2*w}, v3
            s_nop 1
            v_cndmask_b32 v{112+w}, v{112+w}, v5, vcc
            """)
        a("""
        v_max3_f32 v6, v112, v113, v114
        v_max3_f32 v6, v6, v115, v116
        v_max3_f32 v6, v6, v117, v118
        v_max_f32 v6, v6, v119
        """)
        for w in range(8):
            a(f"v_sub_f32 v{112+w}, v{112+w}, v6")
            a(f"v_mul_f32 v{112+w}, s43, v{112+w}")
            a(f"v_exp_f32 v{112+w}, v{112+w}")
        a("""
        s_nop 0
        v_add_f32 v6, v112, v113
        v_add_f32 v7, v114, v115
        v_add_f32 v8, v116, v117
        v_add_f32 v9, v118, v119
        v_add_f32 v6, v6, v7
        v_add_f32 v8, v8, v9
        v_add_f32 v6, v6, v8
        v_rcp_f32 v6, v6
        s_nop 0
        """)
        for w in range(8):
            a(f"v_mul_f32 v{112+w}, v{112+w}, v6")
        for p in range(4):
            a(f"v_cvt_pk_bf16_f32 v{120+p}, v{112+2*p}, v{113+2*p}")
        for d in range(18):
            a(f"v_mov_b32 v{124+d}, 0")
        a("s_waitcnt lgkmcnt(0)")
        for p in range(4):
            b0 = VR[2 * p]
            b1 = VR[2 * p + 1]
            for i in range(9):
                a(f"""
                v_perm_b32 v6, v{b1+i}, v{b0+i}, s61
                v_perm_b32 v7, v{b1+i}, v{b0+i}, s62
                v_dot2_f32_bf16 v{124+2*i}, v6, v{120+p}, v{124+2*i}
                v_dot2_f32_bf16 v{125+2*i}, v7, v{120+p}, v{125+2*i}
                """)
        for i in range(9):
            a(f"v_cvt_pk_bf16_f32 v{232+9*half+i}, v{124+2*i}, v{125+2*i}")
    a("""
    s_barrier
    s_mul_i32 s37, s3, 36
    v_mul_u32_u24 v2, 296, v0
    v_add_u32 v2, s37, v2
    """)
    for half in range(2):
        for i in range(9):
            a(f"ds_write_b32 v2, v{232+9*half+i} offset:{half*64*296 + 4*i}")
    a("""
    v_and_b32 v4, 7, v0
    v_lshrrev_b32 v5, 1, v4                ; g
    v_and_b32 v4, 1, v4                    ; a
    v_lshrrev_b32 v6, 3, v0
    s_lshl_b32 s36, s3, 3
    v_add_u32 v6, s36, v6                  ; trow
    v_lshlrev_b32 v7, 4, v4
    v_lshl_add_u32 v7, v5, 2, v7           ; 16a+4g
    s_and_b32 s36, s21, 1
    s_lshl_b32 s36, s36, 4
    v_subrev_u32 v7, s36, v7
    v_mul_u32_u24 v8, 296, v6
    v_lshl_add_u32 v8, v7, 1, v8
    s_lshl_b32 s36, s20, 7
    v_add_u32 v9, s36, v6
    v_lshlrev_b32 v9, 6, v9
    v_lshl_add_u32 v9, v5, 4, v9
    v_lshl_add_u32 v9, v4, 3, v9
    s_mul_i32 s36, s21, 9
    s_lshr_b32 s36, s36, 1
    s_add_u32 s36, s36, 144
    s_lshl_b32 s36, s36, 17
    v_mov_b32 v10, 0x7f000000
    v_cmp_gt_i32 vcc, 0, v7
    s_nop 1
    v_cndmask_b32 v11, v9, v10, vcc
    v_max_i32 v12, 0, v8
    v_add_u32 v13, 128, v7
    v_cmp_le_i32 vcc, 144, v13
    s_nop 1
    v_cndmask_b32 v13, v9, v10, vcc
    s_waitcnt lgkmcnt(0)
    s_barrier
    """)
    for b in range(5):
        for h in range(2):
            ad = 12 if b == 0 else 8
            a(f"ds_read_b64 v[{16+4*b+2*h}:{17+4*b+2*h}], v{ad} offset:{h*64*296 + 64*b}")
    for b in range(5):
        a(f"s_waitcnt lgkmcnt({8-2*b})")
        vo = 11 if b == 0 else (13 if b == 4 else 9)
        for h in range(2):
            a(f"buffer_store_dwordx2 v[{16+4*b+2*h}:{17+4*b+2*h}], v{vo}, s[16:19], s36 offen offset:{h*4096}" if h*4096 < 4096 else
              f"s_add_u32 s38, s36, 4096\n    buffer_store_dwordx2 v[{16+4*b+2*h}:{17+4*b+2*h}], v{vo}, s[16:19], s38 offen")
        a(f"s_add_u32 s36, s36, {KBS}")
    stamp(a, 5)
    a("s_waitcnt vmcnt(0)")
    stamp(a, 6)
    stamp_dump(a, 7)
    a("s_endpgm")

W_REG = 9216
def gen_g2(a):
    kernel_header(a, "g2_kernel")
    a("""
    s_cmp_ge_u32 s2, 256
    s_cbranch_scc1 G2_END
    s_load_dwordx2 s[4:5], s[0:1], 72      ; ws
    s_load_dwordx2 s[10:11], s[0:1], 0     ; x
    s_load_dwordx2 s[40:41], s[0:1], 56    ; out
    v_lshrrev_b32 v1, 6, v0
    v_and_b32 v0, 63, v0
    s_nop 0
    v_readfirstlane_b32 s3, v1             ; wave
    s_and_b32 s20, s2, 7
    s_lshl_b32 s20, s20, 2
    s_lshr_b32 s21, s2, 3
    s_and_b32 s22, s21, 3
    s_add_u32 s20, s20, s22                ; mi = 4x + (q&3)
    s_lshr_b32 s21, s21, 2                 ; ni
    s_waitcnt lgkmcnt(0)
    """)
    srd(a, 16, 4, HC_BYTES, HC_OFF)
    a(f"s_mul_i32 s36, s21, {W2P_NI}")
    a(f"s_add_u32 s24, s4, {hex(W2P_OFF)}")
    a("s_addc_u32 s25, s5, 0")
    a("s_add_u32 s24, s24, s36")
    a("s_addc_u32 s25, s25, 0")
    a(f"s_mov_b32 s26, {W2P_NI}")
    a("s_mov_b32 s27, 0x00020000")
    srd(a, 44, 10, 2048 * 1152)
    srd(a, 48, 40, 2048 * 1152)
    a(f"""
    v_lshrrev_b32 v10, 2, v0
    v_and_b32 v11, 3, v0
    v_lshrrev_b32 v12, 4, v0
    v_sub_u32 v12, 4, v12
    v_and_b32 v12, 3, v12
    v_xor_b32 v11, v11, v12
    v_lshlrev_b32 v2, 6, v10
    v_lshl_add_u32 v2, v11, 4, v2
    s_lshl_b32 s52, s3, 17
    s_lshl_b32 s36, s20, 12                ; 64*mi*64
    s_add_u32 s52, s52, s36
    s_mul_i32 s53, s3, 4608
    s_mul_i32 s54, s3, {4*W_REG}
    v_lshlrev_b32 v3, 4, v0
    v_add_u32 v7, 4096, v3
    v_mov_b32 v10, 0x7f000000
    v_cmp_gt_u32 vcc, 32, v0
    s_nop 1
    v_cndmask_b32 v7, v10, v7, vcc
    """)
    def dma(buf):
        a(f"""
        s_add_u32 m0, s54, {buf*W_REG}
        s_nop 0
        buffer_load_dwordx4 v2, s[16:19], s52 offen lds
        buffer_load_dwordx4 v2, s[16:19], s52 offen offset:1024 lds
        buffer_load_dwordx4 v2, s[16:19], s52 offen offset:2048 lds
        buffer_load_dwordx4 v2, s[16:19], s52 offen offset:3072 lds
        s_add_u32 m0, s54, {buf*W_REG+4096}
        s_add_u32 s52, s52, {4*KBS}
        buffer_load_dwordx4 v3, s[24:27], s53 offen lds
        buffer_load_dwordx4 v3, s[24:27], s53 offen offset:1024 lds
        buffer_load_dwordx4 v3, s[24:27], s53 offen offset:2048 lds
        buffer_load_dwordx4 v3, s[24:27], s53 offen offset:3072 lds
        s_add_u32 m0, s54, {buf*W_REG+8192}
        s_nop 0
        buffer_load_dwordx4 v7, s[24:27], s53 offen lds
        s_add_u32 s53, s53, {4*4608}
        """)
    stamp(a, 0)
    dma(0)
    a(f"""
    v_and_b32 v10, 15, v0
    v_lshrrev_b32 v11, 2, v10
    v_sub_u32 v11, 4, v11
    v_and_b32 v11, 3, v11
    v_lshrrev_b32 v12, 4, v0
    v_xor_b32 v11, v11, v12
    v_lshlrev_b32 v8, 6, v10
    v_lshl_add_u32 v8, v11, 4, v8
    v_lshrrev_b32 v13, 2, v0
    v_and_b32 v13, 3, v13
    v_lshl_add_u32 v13, v12, 2, v13
    v_lshlrev_b32 v9, 5, v13
    v_and_b32 v14, 3, v0
    v_lshl_add_u32 v9, v14, 3, v9
    v_add_u32 v9, 4096, v9
    v_lshlrev_b32 v6, 4, v13
    v_lshl_add_u32 v6, v14, 3, v6
    v_add_u32 v6, 8192, v6
    v_add_u32 v8, s54, v8
    v_add_u32 v9, s54, v9
    v_add_u32 v6, s54, v6
    """)
    ACC = 64
    for r in range(80):
        a(f"v_mov_b32 v{ACC+r}, 0")
    dma(1)
    dma(2)
    T = [16 + 4 * t for t in range(4)]
    W = [32 + 4 * j for j in range(5)]
    a("s_mov_b32 s34, 0")
    stamp(a, 1)
    a("s_waitcnt vmcnt(18)")
    stamp(a, 2)
    def step(buf):
        bo = buf * W_REG
        a("s_waitcnt vmcnt(18)")
        for tt in range(4):
            a(f"ds_read_b128 v[{T[tt]}:{T[tt]+3}], v8 offset:{bo+1024*tt}")
        for j in range(4):
            a(f"ds_read_b64_tr_b16 v[{W[j]}:{W[j]+1}], v9 offset:{bo+1024*j}")
            a(f"ds_read_b64_tr_b16 v[{W[j]+2}:{W[j]+3}], v9 offset:{bo+1024*j+512}")
        a(f"ds_read_b64_tr_b16 v[{W[4]}:{W[4]+1}], v6 offset:{bo}")
        a(f"ds_read_b64_tr_b16 v[{W[4]+2}:{W[4]+3}], v6 offset:{bo+256}")
        dma((buf + 3) % 4)
        for j in range(5):
            a(f"s_waitcnt lgkmcnt({2*(4-j)})")
            for tt in range(4):
                acc = ACC + (j * 4 + tt) * 4
                a(f"v_mfma_f32_16x16x32_bf16 v[{acc}:{acc+3}], v[{W[j]}:{W[j]+3}], v[{T[tt]}:{T[tt]+3}], v[{acc}:{acc+3}]")
    a.label("G2_LOOP")
    for b in range(4):
        step(b)
    a("""
    s_add_u32 s34, s34, 1
    s_cmp_lt_u32 s34, 10
    s_cbranch_scc1 G2_LOOP
    """)
    step(0)
    a("""
    s_waitcnt vmcnt(0)
    s_barrier
    """)
    stamp(a, 3)
    a("""
    s_mul_i32 s36, s3, 20480
    v_lshlrev_b32 v10, 4, v0
    v_add_u32 v10, s36, v10
    s_nop 7
    """)
    for tile in range(20):
        acc = ACC + tile * 4
        a(f"ds_write_b128 v10, v[{acc}:{acc+3}] offset:{tile*1024}")
    a("""
    v_and_b32 v11, 15, v0
    s_lshl_b32 s36, s20, 6
    s_lshl_b32 s37, s3, 4
    s_add_u32 s36, s36, s37
    v_add_u32 v11, s36, v11
    v_mul_u32_u24 v11, 1152, v11
    v_lshrrev_b32 v12, 4, v0
    v_lshl_add_u32 v11, v12, 3, v11
    s_mul_i32 s36, s21, 144
    v_add_u32 v11, s36, v11
    v_add_u32 v13, 128, v11
    v_mov_b32 v14, 0x7f000000
    v_cmp_gt_u32 vcc, 32, v0
    s_nop 1
    v_cndmask_b32 v13, v14, v13, vcc
    """)
    for j in range(4):
        a(f"buffer_load_dwordx2 v[{16+2*j}:{17+2*j}], v11, s[44:47], 0 offen offset:{32*j}")
    a("buffer_load_dwordx2 v[24:25], v13, s[44:47], 0 offen")
    a("""
    s_waitcnt lgkmcnt(0)
    s_barrier
    s_lshl_b32 s36, s3, 10
    v_lshlrev_b32 v10, 4, v0
    v_add_u32 v10, s36, v10
    """)
    a("v_add_u32 v15, 40960, v10")
    for j in range(5):
        for s_ in range(4):
            r = 64 + (j * 4 + s_) * 4
            ad = 10 if s_ < 2 else 15
            a(f"ds_read_b128 v[{r}:{r+3}], v{ad} offset:{(s_&1)*20480 + j*4096}")
    a("s_waitcnt vmcnt(0)")
    for j in range(5):
        a(f"s_waitcnt lgkmcnt({min(15, 4*(4-j))})")
        r = 64 + j * 16
        for e in range(4):
            a(f"v_add_f32 v{r+e}, v{r+e}, v{r+4+e}")
            a(f"v_add_f32 v{r+8+e}, v{r+8+e}, v{r+12+e}")
            a(f"v_add_f32 v{r+e}, v{r+e}, v{r+8+e}")
        x = 16 + 2 * j
        a(f"""
        v_lshlrev_b32 v30, 16, v{x}
        v_and_b32 v31, 0xffff0000, v{x}
        v_lshlrev_b32 v32, 16, v{x+1}
        v_and_b32 v33, 0xffff0000, v{x+1}
        v_add_f32 v{r}, v{r}, v30
        v_add_f32 v{r+1}, v{r+1}, v31
        v_add_f32 v{r+2}, v{r+2}, v32
        v_add_f32 v{r+3}, v{r+3}, v33
        v_cvt_pk_bf16_f32 v{34+2*j}, v{r}, v{r+1}
        v_cvt_pk_bf16_f32 v{35+2*j}, v{r+2}, v{r+3}
        """)
        if j < 4:
            a(f"buffer_store_dwordx2 v[{34+2*j}:{35+2*j}], v11, s[48:51], 0 offen offset:{32*j}")
        else:
            a(f"buffer_store_dwordx2 v[{34+2*j}:{35+2*j}], v13, s[48:51], 0 offen")
    stamp(a, 4)
    a("s_waitcnt vmcnt(0)")
    stamp(a, 5)
    if os.environ.get("STAMP_G2"): stamp_dump(a, 6)
    a.label("G2_END")
    a("s_endpgm")

def main(path):
    a = A()
    hdr = open("cdna_kernels/" + NAME + ".s.ref").read().split("; Override launch")[0]
    out = hdr
    out += f"; @launch kernel=ln_kernel grid=({1624 if os.environ.get('PREFETCH') else 976},1,1) block=(64,1,1) lds=0\n"
    out += "; @launch kernel=g1_kernel grid=(256,1,1) block=(512,1,1) lds=163840\n"
    out += "; @launch kernel=g2_kernel grid=(256,1,1) block=(256,1,1) lds=147456\n"
    out += '.amdgcn_target "amdgcn-amd-amdhsa--gfx950"\n.text\n'
    gen_ln(a)
    gen_g1(a)
    gen_g2(a)
    out += a.text()
    out += '.section .rodata,"a"\n.p2align 6\n'
    out += kd("ln_kernel", 136)
    out += ".p2align 6\n" + kd("g1_kernel", 256)
    out += ".p2align 6\n" + kd("g2_kernel", 144)
    open(path, "w").write(out)

if __name__ == "__main__":
    main(sys.argv[1] if len(sys.argv) > 1 else "cdna_kernels/" + NAME + ".s")
```

```python
import sys

NAME = "parallel_sum__sliding_local_dilated__glu_gated_reglu__prompt"

XN_OFF = 0
XN_BYTES = 18 * 2048 * 64
HC_OFF = 0x400000
HC_BYTES = 162 * 2048 * 64
W2P_OFF = 0x2000000
W2P_NI = 162 * 4608
WQP_OFF = 0x3000000
WQP_HG = 576 * 864
KBS = 2048 * 64

class A:
    def __init__(self):
        self.l = []
    def __call__(self, s):
        for line in s.strip("\n").split("\n"):
            self.l.append("    " + line.strip())
    def label(self, s):
        self.l.append(s + ":")
    def raw(self, s):
        self.l.append(s)
    def text(self):
        return "\n".join(self.l) + "\n"

def srd(a, d, base, nbytes, off=0):
    if off:
        a(f"s_add_u32 s{d}, s{base}, {hex(off)}")
        a(f"s_addc_u32 s{d+1}, s{base+1}, 0")
    else:
        a(f"s_mov_b32 s{d}, s{base}")
        a(f"s_mov_b32 s{d+1}, s{base+1}")
    a(f"s_mov_b32 s{d+2}, {hex(nbytes)}")
    a(f"s_mov_b32 s{d+3}, 0x00020000")

import os
STAMP = bool(os.environ.get("STAMP"))
def stamp(a, i):
    if STAMP:
        a(f"s_memtime s[{70+2*i}:{71+2*i}]")
def stamp_dump(a, n, wsreg=4):
    if not STAMP: return
    a("s_waitcnt lgkmcnt(0)")
    a(f"s_add_u32 s96, s{wsreg}, 0x8000000")
    a(f"s_addc_u32 s97, s{wsreg+1}, 0")
    a("s_mov_b32 s98, 0x1000000")
    a("s_mov_b32 s99, 0x00020000")
    a("s_lshl_b32 s94, s2, 4")
    a("s_add_u32 s94, s94, s3")
    a("s_lshl_b32 s94, s94, 6")
    a("v_mov_b32 v1, 0")
    for i in range(n):
        a(f"v_mov_b32 v2, s{70+2*i}")
        a(f"buffer_store_dword v2, v1, s[96:99], s94 offen offset:{4*i}")

def kernel_header(a, name):
    a.raw(f".globl {name}")
    a.raw(".p2align 8")
    a.raw(f".type {name},@function")
    a.label(name)

def kd(name, vgpr, sgpr=102):
    acc = (vgpr + 3) // 4 * 4
    return f""".amdhsa_kernel {name}
  .amdhsa_next_free_vgpr {vgpr}
  .amdhsa_next_free_sgpr {sgpr}
  .amdhsa_accum_offset {acc}
  .amdhsa_group_segment_fixed_size 0
  .amdhsa_kernarg_size 80
  .amdhsa_user_sgpr_count 2
  .amdhsa_user_sgpr_kernarg_segment_ptr 1
  .amdhsa_system_sgpr_workgroup_id_x 1
.end_amdhsa_kernel
"""

def gen_ln(a):
    kernel_header(a, "ln_kernel")
    a("""
    s_cmp_ge_u32 s2, 256
    s_cbranch_scc1 RP_ROLE
    s_load_dwordx2 s[4:5], s[0:1], 0
    s_load_dwordx2 s[6:7], s[0:1], 72
    v_lshrrev_b32 v1, 3, v0
    v_and_b32 v2, 7, v0                ; j
    s_lshl_b32 s3, s2, 3
    v_add_u32 v1, s3, v1               ; row
    v_lshrrev_b32 v3, 2, v2            ; j>>2
    v_and_b32 v4, 3, v2                ; g
    s_movk_i32 s16, 1152
    v_mul_lo_u32 v5, v1, s16
    v_lshl_add_u32 v5, v3, 6, v5
    v_lshl_add_u32 v5, v4, 3, v5
    v_lshlrev_b32 v6, 6, v1
    v_lshl_add_u32 v6, v4, 4, v6
    v_lshl_add_u32 v6, v3, 17, v6
    s_waitcnt lgkmcnt(0)
    """)
    srd(a, 8, 4, 2048 * 1152)
    srd(a, 12, 6, XN_BYTES, XN_OFF)
    for i in range(9):
        a(f"buffer_load_dwordx2 v[{8+4*i}:{9+4*i}], v5, s[8:11], 0 offen offset:{128*i}")
        a(f"buffer_load_dwordx2 v[{10+4*i}:{11+4*i}], v5, s[8:11], 0 offen offset:{128*i+32}")
    a("v_mov_b32 v50, 0")
    a("v_mov_b32 v51, 0")
    for i in range(9):
        a(f"s_waitcnt vmcnt({2*(8-i)})")
        for d in range(4):
            src = 8 + 4 * i + d
            lo = 64 + 8 * i + 2 * d
            a(f"v_lshlrev_b32 v{lo}, 16, v{src}")
            a(f"v_and_b32 v{lo+1}, 0xffff0000, v{src}")
            a(f"v_add_f32 v50, v50, v{lo}")
            a(f"v_add_f32 v51, v51, v{lo+1}")
    a("v_add_f32 v50, v50, v51")
    def red8(r):
        a(f"""
        s_nop 1
        v_add_f32_dpp v{r}, v{r}, v{r} quad_perm:[1,0,3,2] row_mask:0xf bank_mask:0xf
        s_nop 1
        v_add_f32_dpp v{r}, v{r}, v{r} quad_perm:[2,3,0,1] row_mask:0xf bank_mask:0xf
        s_nop 1
        v_add_f32_dpp v{r}, v{r}, v{r} row_half_mirror row_mask:0xf bank_mask:0xf
        """)
    red8(50)
    a("v_mul_f32 v50, 0x3ae38e39, v50     ; /576 -> mean (f32)")
    a("v_mov_b32 v52, 0")
    a("v_mov_b32 v53, 0")
    for e in range(0, 72, 2):
        a(f"v_sub_f32 v54, v{64+e}, v50")
        a(f"v_sub_f32 v55, v{65+e}, v50")
        a(f"v_fmac_f32 v52, v54, v54")
        a(f"v_fmac_f32 v53, v55, v55")
    a("v_add_f32 v52, v52, v53")
    red8(52)
    a("""
    v_mul_f32 v52, 0x3ae38e39, v52     ; var f32
    v_cvt_pk_bf16_f32 v54, v50, v52
    v_lshlrev_b32 v50, 16, v54         ; mean_b
    v_and_b32 v52, 0xffff0000, v54     ; var_b
    v_add_f32 v52, 0x3727c5ac, v52     ; + 1e-5
    v_cvt_pk_bf16_f32 v54, v52, v52
    v_lshlrev_b32 v52, 16, v54
    v_sqrt_f32 v52, v52
    s_nop 0
    v_cvt_pk_bf16_f32 v54, v52, v52
    v_lshlrev_b32 v52, 16, v54
    v_rcp_f32 v53, v52                 ; rinv
    s_nop 0
    """)
    for i in range(9):
        for d in range(4):
            lo = 64 + 8 * i + 2 * d
            dst = 8 + 4 * i + d
            a(f"""
            v_sub_f32 v54, v{lo}, v50
            v_sub_f32 v55, v{lo+1}, v50
            v_cvt_pk_bf16_f32 v56, v54, v55
            v_lshlrev_b32 v54, 16, v56
            v_and_b32 v55, 0xffff0000, v56
            v_mul_f32 v56, v54, v53
            v_mul_f32 v57, v55, v53
            v_fma_f32 v58, -v56, v52, v54
            v_fma_f32 v59, -v57, v52, v55
            v_fmac_f32 v56, v58, v53
            v_fmac_f32 v57, v59, v53
            v_cvt_pk_bf16_f32 v{dst}, v56, v57
            """)
        a(f"s_mov_b32 s17, {2*KBS*i}")
        a(f"buffer_store_dwordx4 v[{8+4*i}:{11+4*i}], v6, s[12:15], s17 offen")
    a.label("LN_END")
    a("s_endpgm")
    a.label("RP_ROLE")
    if os.environ.get("PREFETCH"):
        a("""
        s_cmp_ge_u32 s2, 1624
        s_cbranch_scc1 LN_END
        s_cmp_lt_u32 s2, 976
        s_cbranch_scc1 RP_ROLE2
        s_load_dwordx2 s[4:5], s[0:1], 32      ; W_gate
        s_load_dwordx2 s[6:7], s[0:1], 40      ; W_up
        s_sub_u32 s20, s2, 976                 ; 0..647
        s_waitcnt lgkmcnt(0)
        s_cmp_ge_u32 s20, 324
        s_cselect_b32 s12, s6, s4
        s_cselect_b32 s13, s7, s5
        s_mov_b32 s14, 5308416
        s_mov_b32 s15, 0x00020000
        s_sub_u32 s21, s20, 324
        s_cmp_ge_u32 s20, 324
        s_cselect_b32 s21, s21, s20
        s_lshl_b32 s21, s21, 14
        v_lshlrev_b32 v1, 4, v0
        """)
        for i in range(16):
            a(f"buffer_load_dwordx4 v[{8+4*i}:{11+4*i}], v1, s[12:15], s21 offen offset:{(1024*i)%4096}")
            if i % 4 == 3:
                a("s_add_u32 s21, s21, 4096")
        a("s_waitcnt vmcnt(0)")
        a("s_endpgm")
        a.label("RP_ROLE2")
    a("""
    s_cmp_ge_u32 s2, 976
    s_cbranch_scc1 LN_END
    s_load_dwordx2 s[4:5], s[0:1], 72      ; ws
    s_load_dwordx2 s[6:7], s[0:1], 48      ; W_down
    s_load_dwordx2 s[8:9], s[0:1], 16      ; wo
    s_load_dwordx2 s[10:11], s[0:1], 8     ; wqkv
    s_cmp_ge_u32 s2, 904
    s_cbranch_scc1 RPQ_ROLE
    s_sub_u32 s20, s2, 256
    s_lshr_b32 s21, s20, 2                 ; kb
    s_and_b32 s22, s20, 3
    s_lshl_b32 s22, s22, 1
    s_waitcnt lgkmcnt(0)
    s_sub_u32 s23, s21, 144
    s_cmp_ge_u32 s21, 144
    s_cselect_b32 s12, s8, s6
    s_cselect_b32 s13, s9, s7
    s_mov_b32 s14, 5308416
    s_mov_b32 s15, 0x00020000
    s_cselect_b32 s23, s23, s21
    s_mul_i32 s23, s23, 36864              ; 32 rows * 1152
    s_mul_i32 s24, s22, 144
    s_add_u32 s23, s23, s24
    s_mul_i32 s25, s21, 4608
    """)
    srd(a, 16, 4, 8 * W2P_NI, W2P_OFF)
    a(f"""
    s_mul_i32 s24, s22, {W2P_NI}
    s_add_u32 s25, s25, s24
    v_lshrrev_b32 v1, 1, v0
    v_mul_u32_u24 v1, 1152, v1
    v_and_b32 v2, 1, v0
    v_lshl_add_u32 v1, v2, 4, v1
    v_mul_u32_u24 v2, 1152, v0
    v_add_u32 v2, 128, v2
    v_lshlrev_b32 v3, 4, v0
    v_add_u32 v4, 4096, v3
    v_mov_b32 v5, 0x7f000000
    v_cmp_gt_u32 vcc, 32, v0
    s_nop 1
    v_cndmask_b32 v2, v5, v2, vcc
    v_cndmask_b32 v4, v5, v4, vcc
    s_add_u32 s26, s23, 144
    s_add_u32 s27, s25, {W2P_NI}
    """)
    for jb, so in ((0, 23), (1, 26)):
        for n in range(4):
            a(f"buffer_load_dwordx4 v[{8+20*jb+4*n}:{11+20*jb+4*n}], v1, s[12:15], s{so} offen offset:{32*n}")
        a(f"buffer_load_dwordx4 v[{24+20*jb}:{27+20*jb}], v2, s[12:15], s{so} offen")
    for jb, so in ((0, 25), (1, 27)):
        for n in range(4):
            a("s_waitcnt vmcnt(9)")
            a(f"buffer_store_dwordx4 v[{8+20*jb+4*n}:{11+20*jb+4*n}], v3, s[16:19], s{so} offen offset:{1024*n}")
        a("s_waitcnt vmcnt(9)")
        a(f"buffer_store_dwordx4 v[{24+20*jb}:{27+20*jb}], v4, s[16:19], s{so} offen")
    a("s_endpgm")
    a.label("RPQ_ROLE")
    a("""
    s_sub_u32 s20, s2, 904                 ; 0..71 : rows 8*s20..
    s_lshl_b32 s20, s20, 3
    s_waitcnt lgkmcnt(0)
    """)
    srd(a, 12, 10, 576 * 3456)
    srd(a, 16, 4, 4 * WQP_HG, WQP_OFF)
    a("""
    s_mul_i32 s21, s20, 3456
    s_mul_i32 s22, s20, 864
    v_lshlrev_b32 v1, 4, v0
    """)
    for i in range(27):
        a(f"buffer_load_dwordx4 v[{8+4*i}:{11+4*i}], v1, s[12:15], s21 offen offset:{(1024*i)%4096}")
        if i % 4 == 3:
            a("s_add_u32 s21, s21, 4096")
    for i in range(27):
        a(f"""
        v_add_u32 v2, {64*i}, v0
        v_mul_u32_u24 v3, 1214, v2
        v_lshrrev_b32 v3, 18, v3               ; row = P/216
        v_mul_u32_u24 v4, 216, v3
        v_sub_u32 v4, v2, v4                   ; u
        v_mul_u32_u24 v5, 911, v4
        v_lshrrev_b32 v5, 16, v5               ; seg
        v_mul_u32_u24 v6, 72, v5
        v_sub_u32 v6, v4, v6                   ; w
        v_mul_u32_u24 v7, 3641, v6
        v_lshrrev_b32 v7, 16, v7               ; hg
        v_mul_u32_u24 v120, 18, v7
        v_sub_u32 v6, v6, v120                 ; c
        v_mul_u32_u24 v5, 18, v5
        v_add_u32 v6, v6, v5
        v_mul_u32_u24 v3, 864, v3
        v_lshl_add_u32 v3, v6, 4, v3
        s_mov_b32 s24, {WQP_HG}
        v_mul_lo_u32 v7, v7, s24
        v_add_u32 v3, v3, v7
        s_waitcnt vmcnt(26)
        buffer_store_dwordx4 v[{8+4*i}:{11+4*i}], v3, s[16:19], s22 offen
        """)
    a("s_endpgm")

G_STAGE = 40960
Q_STAGE = 37888
Q_RS = 1000

def gen_g1(a):
    kernel_header(a, "g1_kernel")
    a("""
    s_cmp_ge_u32 s2, 256
    s_cbranch_scc1 G1_END
    s_load_dwordx2 s[4:5], s[0:1], 72      ; ws
    s_load_dwordx2 s[6:7], s[0:1], 32      ; W_gate
    s_load_dwordx2 s[8:9], s[0:1], 40      ; W_up
    s_load_dwordx2 s[10:11], s[0:1], 8     ; wqkv
    v_lshrrev_b32 v1, 6, v0
    v_and_b32 v0, 63, v0                   ; lane
    s_nop 0
    v_readfirstlane_b32 s3, v1
    s_waitcnt lgkmcnt(0)
    """)
    srd(a, 12, 4, XN_BYTES, XN_OFF)
    srd(a, 16, 4, HC_BYTES, HC_OFF)
    a("""
    s_cmp_ge_u32 s2, 192
    s_cbranch_scc1 QKV_ROLE
    """)
    import os
    if os.environ.get("SKIP_GU"): a("s_endpgm")
    gen_g1_gateup(a)
    a.label("QKV_ROLE")
    if os.environ.get("SKIP_QKV"): a("s_endpgm")
    gen_g1_qkv(a)
    a.label("G1_END")
    a("s_endpgm")

def gen_g1_gateup(a):
    a("""
    s_lshr_b32 s20, s2, 3
    s_and_b32 s20, s20, 7                  ; mi
    s_and_b32 s21, s2, 7
    s_mul_i32 s21, s21, 3
    s_lshr_b32 s22, s2, 6
    s_add_u32 s21, s21, s22                ; fi
    s_lshr_b32 s22, s3, 1                  ; tw = w>>1  (0..3)
    s_and_b32 s23, s3, 1                   ; fw = w&1
    """)
    a("""
    s_cmp_ge_u32 s3, 4
    s_cselect_b32 s24, s8, s6
    s_cselect_b32 s25, s9, s7
    s_mov_b32 s26, 5308416
    s_mov_b32 s27, 0x00020000
    """)
    a("""
    s_lshl_b32 s28, s20, 14                ; 256*mi*64
    s_lshl_b32 s36, s3, 11                 ; 2w*16 rows*64B = w*2048
    s_add_u32 s28, s28, s36
    s_mov_b32 s30, s36
    s_and_b32 s36, s3, 3                   ; a
    s_mul_i32 s29, s36, 73728              ; 8a*9216
    s_mul_i32 s37, s21, 384
    s_add_u32 s29, s29, s37
    s_mul_i32 s31, s36, 3072
    s_lshr_b32 s37, s3, 2
    s_mul_i32 s37, s37, 12288
    s_add_u32 s31, s31, s37
    s_add_u32 s31, s31, 16384
    """)
    a("""
    v_lshrrev_b32 v10, 2, v0
    v_and_b32 v11, 3, v0
    v_lshrrev_b32 v12, 4, v0
    v_xor_b32 v11, v11, v12
    v_lshlrev_b32 v2, 6, v10
    v_lshl_add_u32 v2, v11, 4, v2
    """)
    for b in range(3):
        a(f"""
        v_add_u32 v10, {64*b}, v0
        v_mul_u32_u24 v11, 2731, v10
        v_lshrrev_b32 v11, 16, v11             ; k = P/24
        v_mul_u32_u24 v12, 24, v11
        v_sub_u32 v12, v10, v12                ; u'
        v_lshrrev_b32 v13, 1, v11
        v_and_b32 v13, 1, v13
        v_lshlrev_b32 v13, 2, v13
        v_xor_b32 v12, v12, v13                ; u
        v_mul_u32_u24 v11, 9216, v11
        v_lshl_add_u32 v{3+b}, v12, 4, v11
        """)
        if b:
            a(f"v_subrev_u32 v{3+b}, {1024*b}, v{3+b}")
    a("""
    v_and_b32 v10, 31, v0
    s_lshl_b32 s36, s22, 6
    v_add_u32 v10, s36, v10
    v_lshrrev_b32 v11, 5, v0               ; hh
    v_lshrrev_b32 v12, 2, v0
    v_and_b32 v12, 3, v12                  ; r == (l>>2)&3
    v_xor_b32 v13, v11, v12
    v_lshlrev_b32 v6, 6, v10
    v_lshl_add_u32 v6, v13, 4, v6
    v_xor_b32 v7, 32, v6
    """)
    a("""
    v_lshrrev_b32 v13, 4, v0
    v_and_b32 v13, 1, v13
    v_and_b32 v14, 3, v0
    v_lshl_add_u32 v13, v13, 2, v14        ; c
    v_and_b32 v14, 1, v13                  ; hho
    v_lshrrev_b32 v15, 1, v13              ; q
    v_lshrrev_b32 v16, 1, v15              ; q>>1
    v_and_b32 v15, 1, v15                  ; q&1
    v_lshl_add_u32 v14, v14, 1, v16
    v_lshl_add_u32 v14, v15, 2, v14        ; e
    v_lshl_add_u32 v15, v11, 2, v12        ; 4hh + r
    v_mul_u32_u24 v15, 384, v15
    v_lshl_add_u32 v15, v14, 3, v15
    s_mul_i32 s36, s23, 192
    s_add_u32 s36, s36, 16384
    v_add_u32 v15, s36, v15                ; const
    v_lshrrev_b32 v16, 1, v12              ; b
    v_lshlrev_b32 v16, 6, v16              ; 64b
    s_cmp_eq_u32 s23, 0
    s_cselect_b32 s36, 1, -1
    v_mul_lo_u32 v16, v16, s36
    v_add_u32 v8, v15, v16
    v_sub_u32 v9, v15, v16
    """)
    def dma_parts(bufreg):
        return [
        f"""s_add_u32 m0, s{bufreg}, s30
        s_nop 0
        buffer_load_dwordx4 v2, s[12:15], s28 offen lds""",
        f"""buffer_load_dwordx4 v2, s[12:15], s28 offen offset:1024 lds
        s_add_u32 s28, s28, {KBS}""",
        f"""s_add_u32 m0, s{bufreg}, s31
        s_nop 0
        buffer_load_dwordx4 v3, s[24:27], s29 offen lds""",
        f"""buffer_load_dwordx4 v4, s[24:27], s29 offen offset:1024 lds""",
        f"""buffer_load_dwordx4 v5, s[24:27], s29 offen offset:2048 lds
        s_add_u32 s29, s29, {32*9216}"""]
    def dma(bufreg):
        for p in dma_parts(bufreg):
            a(p)
    stamp(a, 0)
    a("s_mov_b32 s32, 0")
    dma(32)
    ACC = 64
    for r in range(192):
        a(f"v_mov_b32 v{ACC+r}, 0")
    for st in range(1, 3):
        a(f"s_mov_b32 s32, {st*G_STAGE}")
        dma(32)
    a(f"s_mov_b32 s32, {3*G_STAGE}")
    a("s_mov_b32 s33, 0")
    TB = [40, 48]
    WB = [16, 20, 24, 28, 32, 36]
    def set_addrs():
        a("""
        v_add_u32 v10, s33, v6
        v_add_u32 v11, s33, v7
        v_add_u32 v12, s33, v8
        v_add_u32 v13, s33, v9
        """)
    def rd_tok(buf, ks):
        ad = 10 + ks
        a(f"ds_read_b128 v[{TB[buf]}:{TB[buf]+3}], v{ad}")
        a(f"ds_read_b128 v[{TB[buf]+4}:{TB[buf]+7}], v{ad} offset:2048")
    def rd_w(j, ks):
        jj = j % 3
        mat = j // 3
        ad = 12 + (jj & 1)
        off = 64 * jj + 3072 * ks + 12288 * mat
        w = WB[j]
        a(f"ds_read_b64_tr_b16 v[{w}:{w+1}], v{ad} offset:{off}")
        a(f"ds_read_b64_tr_b16 v[{w+2}:{w+3}], v{ad} offset:{off+6144}")
    def mfma(j, buf):
        w = WB[j]
        for tt in range(2):
            acc = ACC + (j * 2 + tt) * 16
            t = TB[buf] + 4 * tt
            a(f"v_mfma_f32_32x32x16_bf16 v[{acc}:{acc+15}], v[{w}:{w+3}], v[{t}:{t+3}], v[{acc}:{acc+15}]")
    stamp(a, 1)
    a("s_waitcnt vmcnt(10)")
    a("s_barrier")
    stamp(a, 2)
    set_addrs()
    rd_tok(0, 0)
    for j in range(6):
        rd_w(j, 0)
    a("s_mov_b32 s34, 0")
    if os.environ.get("PRIO"):
        a("s_cmp_ge_u32 s3, 4")
        a("s_cbranch_scc0 GU_NP")
        a("s_setprio 1")
        a.label("GU_NP")
    a.label("GU_LOOP")
    rd_tok(1, 1)
    for j in range(6):
        a("s_waitcnt lgkmcnt(12)")
        mfma(j, 0)
        rd_w(j, 1)
    a("s_waitcnt vmcnt(5)")
    a("s_barrier")
    a(f"""
    s_add_u32 s33, s33, {G_STAGE}
    s_cmp_eq_u32 s33, {4*G_STAGE}
    s_cselect_b32 s33, 0, s33
    """)
    set_addrs()
    rd_tok(0, 0)
    parts = dma_parts(32)
    for j in range(6):
        a("s_waitcnt lgkmcnt(12)")
        mfma(j, 1)
        rd_w(j, 0)
        if j < 5:
            a(parts[j])
    a(f"""
    s_add_u32 s32, s32, {G_STAGE}
    s_cmp_eq_u32 s32, {4*G_STAGE}
    s_cselect_b32 s32, 0, s32
    """)
    a("""
    s_add_u32 s34, s34, 1
    s_cmp_lt_u32 s34, 18
    s_cbranch_scc1 GU_LOOP
    """)
    a("""
    s_waitcnt lgkmcnt(0)
    s_nop 15
    """)
    stamp(a, 3)
    a("""
    v_and_b32 v10, 31, v0
    s_lshl_b32 s36, s20, 8
    s_lshl_b32 s37, s22, 6
    s_add_u32 s36, s36, s37
    v_add_u32 v10, s36, v10
    v_lshlrev_b32 v10, 6, v10
    v_lshrrev_b32 v11, 5, v0
    v_lshl_add_u32 v10, v11, 5, v10
    s_mul_i32 s36, s21, 6
    s_mul_i32 s37, s23, 3
    s_add_u32 s36, s36, s37
    s_lshl_b32 s36, s36, 17                ; kb*131072
    """)
    for j in range(3):
        for tt in range(2):
            g = ACC + (j * 2 + tt) * 16
            u = ACC + ((j + 3) * 2 + tt) * 16
            o = 16 + 8 * tt
            for p in range(8):
                a(f"""
                v_cvt_pk_bf16_f32 v32, v{g+2*p}, v{g+2*p+1}
                v_cvt_pk_bf16_f32 v33, v{u+2*p}, v{u+2*p+1}
                v_pk_max_i16 v32, v32, 0
                v_lshlrev_b32 v34, 16, v32
                v_and_b32 v35, 0xffff0000, v32
                v_lshlrev_b32 v36, 16, v33
                v_and_b32 v37, 0xffff0000, v33
                v_pk_mul_f32 v[34:35], v[34:35], v[36:37]
                v_cvt_pk_bf16_f32 v{o+p}, v34, v35
                """)
            HF = os.environ.get("HFLAG", "")
            a(f"buffer_store_dwordx4 v[{o}:{o+3}], v10, s[16:19], s36 offen offset:{2048*tt} {HF}")
            a(f"buffer_store_dwordx4 v[{o+4}:{o+7}], v10, s[16:19], s36 offen offset:{2048*tt+16} {HF}")
        a(f"s_add_u32 s36, s36, {KBS}")
    stamp(a, 4)
    a("s_waitcnt vmcnt(0)")
    stamp(a, 5)
    stamp_dump(a, 6)
    a("s_endpgm")

def gen_g1_qkv(a):
    a("""
    s_sub_u32 s20, s2, 192
    s_and_b32 s21, s20, 3                  ; hg
    s_lshr_b32 s22, s20, 3
    s_lshl_b32 s22, s22, 1
    s_lshr_b32 s23, s20, 2
    s_and_b32 s23, s23, 1
    s_add_u32 s20, s22, s23                ; mi (0..15)
    s_lshr_b32 s22, s3, 2                  ; th = w>>2
    s_and_b32 s23, s3, 3                   ; cg = w&3
    """)
    a(f"s_mul_i32 s36, s21, {WQP_HG}")
    a(f"s_add_u32 s24, s4, {hex(WQP_OFF)}")
    a("s_addc_u32 s25, s5, 0")
    a("s_add_u32 s24, s24, s36")
    a("s_addc_u32 s25, s25, 0")
    a(f"s_mov_b32 s26, {WQP_HG}")
    a("s_mov_b32 s27, 0x00020000")
    for i in range(4):
        a(f"s_lshl_b32 s36, s3, 10")
        a(f"s_add_u32 s36, s36, {8192*i}")
        a(f"v_lshlrev_b32 v{2+i}, 4, v0")
        a(f"v_add_u32 v{2+i}, s36, v{2+i}")
    a("""
    v_lshrrev_b32 v10, 2, v0
    v_and_b32 v11, 3, v0
    v_lshrrev_b32 v12, 4, v0
    v_sub_u32 v12, 4, v12
    v_and_b32 v12, 3, v12
    v_xor_b32 v11, v11, v12
    v_lshlrev_b32 v6, 6, v10
    v_lshl_add_u32 v6, v11, 4, v6
    """)
    a("""
    s_mov_b32 s44, 0
    s_lshl_b32 s36, s20, 7                 ; 128*mi
    s_sub_u32 s37, s3, 3                   ; w-3
    s_lshl_b32 s37, s37, 5                 ; 32*(w-3) rows = 16*(2(w-3))
    s_add_u32 s36, s36, s37
    s_sub_u32 s36, s36, 16
    s_max_i32 s38, s36, 0
    s_lshl_b32 s38, s38, 6
    s_add_u32 s39, s36, 16
    s_lshl_b32 s39, s39, 6
    s_cmp_lt_u32 s3, 3
    s_cselect_b32 s28, s24, s12
    s_cselect_b32 s29, s25, s13
    s_cselect_b32 s30, s26, s14
    s_mov_b32 s31, 0x00020000
    s_cselect_b32 s45, s44, s38
    s_cselect_b32 s46, 0x7f000000, s39
    s_mov_b32 s47, 131072
    s_cselect_b32 s47, 27648, s47
    s_lshl_b32 s48, s3, 10
    s_add_u32 s48, s48, 10240
    s_add_u32 s37, s48, 24576
    s_sub_u32 s36, s3, 3
    s_lshl_b32 s36, s36, 11
    s_add_u32 s50, s36, 1024
    s_cmp_lt_u32 s3, 3
    s_cselect_b32 s49, s37, s36
    """)
    a(f"""
    s_cmp_lt_u32 s3, 3
    s_cselect_b32 s51, 1, 0                ; flag w<3
    v_mov_b32 v7, v6
    s_cmp_lt_u32 s3, 3
    s_cbranch_scc0 QK_S3TOK
    v_mov_b32 v7, v5
    """)
    a.label("QK_S3TOK")
    def dma_parts(bufreg):
        return [
        f"""s_add_u32 m0, s{bufreg}, s48
        s_nop 0
        buffer_load_dwordx4 v2, s[24:27], s44 offen lds""",
        f"""s_add_u32 m0, m0, 8192
        s_nop 0
        buffer_load_dwordx4 v3, s[24:27], s44 offen lds""",
        f"""s_add_u32 m0, m0, 8192
        s_nop 0
        buffer_load_dwordx4 v4, s[24:27], s44 offen lds""",
        f"""s_add_u32 m0, s{bufreg}, s49
        s_add_u32 s44, s44, 27648
        buffer_load_dwordx4 v7, s[28:31], s45 offen lds""",
        f"""s_add_u32 m0, s{bufreg}, s50
        s_cmp_eq_u32 s51, 1
        s_cselect_b32 m0, {4*Q_STAGE}, m0
        s_add_u32 s45, s45, s47
        buffer_load_dwordx4 v6, s[12:15], s46 offen lds
        s_add_u32 s46, s46, 131072"""]
    def dma(bufreg):
        for p in dma_parts(bufreg):
            a(p)
    stamp(a, 0)
    a("s_mov_b32 s32, 0")
    dma(32)
    a("""
    v_and_b32 v10, 15, v0
    v_lshrrev_b32 v11, 2, v10
    v_sub_u32 v11, 4, v11
    v_and_b32 v11, 3, v11
    v_lshrrev_b32 v12, 4, v0               ; g
    v_xor_b32 v11, v11, v12
    s_mul_i32 s36, s22, 80
    v_add_u32 v10, s36, v10
    v_lshlrev_b32 v8, 6, v10
    v_lshl_add_u32 v8, v11, 4, v8
    v_lshrrev_b32 v13, 2, v0
    v_and_b32 v13, 3, v13                  ; r
    v_lshl_add_u32 v13, v12, 2, v13        ; 4g+r
    v_mul_u32_u24 v9, 864, v13
    v_and_b32 v14, 3, v0
    v_lshl_add_u32 v9, v14, 3, v9
    s_mul_i32 s36, s23, 224
    s_add_u32 s36, s36, 10240
    v_add_u32 v9, s36, v9
    """)
    ACC = 100
    for r in range(140):
        a(f"v_mov_b32 v{ACC+r}, 0")
    a(f"""
    v_and_b32 v10, 15, v0
    s_mul_i32 s36, s22, 80
    v_add_u32 v10, s36, v10
    v_mul_u32_u24 v10, {Q_RS}, v10
    v_lshrrev_b32 v11, 4, v0
    v_lshlrev_b32 v11, 2, v11
    s_mul_i32 s36, s23, 112
    v_add_u32 v11, s36, v11                ; c base (j=0,e=0)
    """)
    for j in range(7):
        for e in range(2):
            d = 84 + 2 * j + e
            a(f"""
            v_add_u32 v12, {16*j+2*e}, v11
            v_mul_u32_u24 v13, 456, v12
            v_lshrrev_b32 v13, 16, v13             ; seg = c/144
            v_mul_u32_u24 v14, 144, v13
            v_sub_u32 v12, v12, v14
            v_mul_u32_u24 v14, 3641, v12
            v_lshrrev_b32 v14, 16, v14             ; hd
            v_mul_u32_u24 v15, 18, v14
            v_sub_u32 v12, v12, v15                ; d
            v_mul_u32_u24 v13, 320, v13
            v_mul_u32_u24 v14, 40, v14
            v_add3_u32 v13, v13, v14, v10
            v_lshl_add_u32 v{d}, v12, 1, v13
            """)
    for st in range(1, 3):
        a(f"s_mov_b32 s32, {st*Q_STAGE}")
        dma(32)
    a(f"s_mov_b32 s32, {3*Q_STAGE}")
    a("s_mov_b32 s33, 0")
    TB = [16, 36]
    WB = [56 + 4 * j for j in range(7)]
    def rd_tok(buf, tt):
        t = TB[buf] + 4 * tt
        a(f"ds_read_b128 v[{t}:{t+3}], v10 offset:{1024*tt}")
    def rd_w(j, ad):
        w = WB[j]
        a(f"ds_read_b64_tr_b16 v[{w}:{w+1}], v{ad} offset:{32*j}")
        a(f"ds_read_b64_tr_b16 v[{w+2}:{w+3}], v{ad} offset:{32*j+16*864}")
    lab = [0]
    def mfma(j, buf):
        w = WB[j]
        for tt in range(5):
            acc = ACC + (j * 5 + tt) * 4
            t = TB[buf] + 4 * tt
            if tt == 4:
                lab[0] += 1
                a("s_cmp_eq_u32 s22, 1")
                a(f"s_cbranch_scc1 QK_SK{lab[0]}")
            a(f"v_mfma_f32_16x16x32_bf16 v[{acc}:{acc+3}], v[{w}:{w+3}], v[{t}:{t+3}], v[{acc}:{acc+3}]")
            if tt == 4:
                a.label(f"QK_SK{lab[0]}")
    stamp(a, 1)
    a("s_waitcnt vmcnt(10)")
    a("s_barrier")
    stamp(a, 2)
    a("v_add_u32 v10, s33, v8")
    a("v_add_u32 v12, s33, v9")
    for tt in range(5):
        rd_tok(0, tt)
    PD = int(os.environ.get("PD", "3"))
    for j in range(PD):
        rd_w(j, 12)
    a("s_mov_b32 s34, 0")
    if os.environ.get("PRIO"):
        a("s_cmp_lt_u32 s3, 4")
        a("s_cbranch_scc0 QK_NP")
        a("s_setprio 1")
        a.label("QK_NP")
    a.label("QK_LOOP")
    for half in range(2):
        a("s_waitcnt vmcnt(5)")
        a("s_barrier")
        parts = dma_parts(32)
        a(f"""
        s_add_u32 s33, s33, {Q_STAGE}
        s_cmp_eq_u32 s33, {4*Q_STAGE}
        s_cselect_b32 s33, 0, s33
        v_mov_b32 v11, v12
        v_add_u32 v10, s33, v8
        v_add_u32 v12, s33, v9
        """)
        q = [f"W{j}{h}" for j in range(PD) for h in "ab"]
        for j in range(7):
            idx = q.index(f"W{j}b")
            remain = len(q) - idx - 1
            a(f"s_waitcnt lgkmcnt({remain})")
            q = q[idx + 1:]
            mfma(j, half)
            if j < 5:
                rd_tok(1 - half, j); q.append(f"T{j}")
            jn = j + PD
            if jn < 7:
                rd_w(jn, 11); q += [f"W{jn}a", f"W{jn}b"]
            else:
                rd_w(jn - 7, 12); q += [f"n{jn-7}a", f"n{jn-7}b"]
            assert len(q) <= 15, len(q)
            if j < 5:
                a(parts[j])
        a(f"""
        s_add_u32 s32, s32, {Q_STAGE}
        s_cmp_eq_u32 s32, {4*Q_STAGE}
        s_cselect_b32 s32, 0, s32
        """)
        assert [x for x in q if x[0]=="n"] == [f"n{j}{h}" for j in range(PD) for h in "ab"], q
        assert q.index("n0a") > max([q.index(x) for x in q if x[0]=="T"] + [-1]) or PD != 3, q
    a("""
    s_add_u32 s34, s34, 1
    s_cmp_lt_u32 s34, 9
    s_cbranch_scc1 QK_LOOP
    """)
    stamp(a, 3)
    a("""
    s_waitcnt vmcnt(0) lgkmcnt(0)
    s_barrier
    """)
    for tt in range(5):
        for j in range(7):
            acc = ACC + (j * 5 + tt) * 4
            a(f"v_cvt_pk_bf16_f32 v12, v{acc}, v{acc+1}")
            a(f"v_cvt_pk_bf16_f32 v13, v{acc+2}, v{acc+3}")
            a(f"ds_write_b32 v{84+2*j}, v12 offset:{16*tt*Q_RS}")
            a(f"ds_write_b32 v{85+2*j}, v13 offset:{16*tt*Q_RS}")
    a("""
    s_waitcnt lgkmcnt(0)
    s_barrier
    """)
    stamp(a, 4)
    a("s_mul_i32 s37, s3, 40")
    a("s_mov_b32 s35, 0x3e715bef              ; scale = 18^-0.5 (f32)")
    a("s_mov_b32 s43, 0x3fb8aa3b              ; log2(e)")
    a("s_mov_b32 s61, 0x05040100")
    a("s_mov_b32 s62, 0x07060302")
    def rd_row(dst, off):
        for i in range(4):
            a(f"ds_read_b64 v[{dst+2*i}:{dst+2*i+1}], v2 offset:{off+8*i}")
        a(f"ds_read_b32 v{dst+8}, v2 offset:{off+32}")
    KR = [32 + 10 * w for w in range(8)]
    VR = [152 + 10 * w for w in range(8)]
    for half in range(2):
        a(f"""
        v_add_u32 v1, {64*half}, v0
        v_add_u32 v2, 2, v1
        v_mul_u32_u24 v2, {Q_RS}, v2
        v_add_u32 v2, s37, v2
        s_lshl_b32 s38, s20, 7
        v_add_u32 v3, s38, v1
        """)
        rd_row(16, 14 * Q_RS)
        for w in range(8):
            rd_row(KR[w], (14 - 2 * w) * Q_RS + 320)
        for w in range(8):
            rd_row(VR[w], (14 - 2 * w) * Q_RS + 640)
        for w in range(8):
            n_after = (7 - w) * 5 + 40
            a(f"s_waitcnt lgkmcnt({min(n_after, 15)})")
            b = KR[w]
            a(f"v_mov_b32 v{112+w}, 0")
            for i in range(9):
                a(f"v_dot2_f32_bf16 v{112+w}, v{16+i}, v{b+i}, v{112+w}")
        a("v_mov_b32 v5, 0xce6e0000")
        for w in range(0, 8, 2):
            a(f"""
            v_cvt_pk_bf16_f32 v6, v{112+w}, v{113+w}
            v_lshlrev_b32 v{112+w}, 16, v6
            v_and_b32 v{113+w}, 0xffff0000, v6
            v_mul_f32 v{112+w}, s35, v{112+w}
            v_mul_f32 v{113+w}, s35, v{113+w}
            v_cvt_pk_bf16_f32 v6, v{112+w}, v{113+w}
            v_lshlrev_b32 v{112+w}, 16, v6
            v_and_b32 v{113+w}, 0xffff0000, v6
            """)
        for w in range(1, 8):
            a(f"""
            v_cmp_gt_u32 vcc, {2*w}, v3
            s_nop 1
            v_cndmask_b32 v{112+w}, v{112+w}, v5, vcc
            """)
        a("""
        v_max3_f32 v6, v112, v113, v114
        v_max3_f32 v6, v6, v115, v116
        v_max3_f32 v6, v6, v117, v118
        v_max_f32 v6, v6, v119
        """)
        for w in range(8):
            a(f"v_sub_f32 v{112+w}, v{112+w}, v6")
            a(f"v_mul_f32 v{112+w}, s43, v{112+w}")
            a(f"v_exp_f32 v{112+w}, v{112+w}")
        a("""
        s_nop 0
        v_add_f32 v6, v112, v113
        v_add_f32 v7, v114, v115
        v_add_f32 v8, v116, v117
        v_add_f32 v9, v118, v119
        v_add_f32 v6, v6, v7
        v_add_f32 v8, v8, v9
        v_add_f32 v6, v6, v8
        v_rcp_f32 v6, v6
        s_nop 0
        """)
        for w in range(8):
            a(f"v_mul_f32 v{112+w}, v{112+w}, v6")
        for p in range(4):
            a(f"v_cvt_pk_bf16_f32 v{120+p}, v{112+2*p}, v{113+2*p}")
        for d in range(18):
            a(f"v_mov_b32 v{124+d}, 0")
        a("s_waitcnt lgkmcnt(0)")
        for p in range(4):
            b0 = VR[2 * p]
            b1 = VR[2 * p + 1]
            for i in range(9):
                a(f"""
                v_perm_b32 v6, v{b1+i}, v{b0+i}, s61
                v_perm_b32 v7, v{b1+i}, v{b0+i}, s62
                v_dot2_f32_bf16 v{124+2*i}, v6, v{120+p}, v{124+2*i}
                v_dot2_f32_bf16 v{125+2*i}, v7, v{120+p}, v{125+2*i}
                """)
        for i in range(9):
            a(f"v_cvt_pk_bf16_f32 v{232+9*half+i}, v{124+2*i}, v{125+2*i}")
    a("""
    s_barrier
    s_mul_i32 s37, s3, 36
    v_mul_u32_u24 v2, 296, v0
    v_add_u32 v2, s37, v2
    """)
    for half in range(2):
        for i in range(9):
            a(f"ds_write_b32 v2, v{232+9*half+i} offset:{half*64*296 + 4*i}")
    a("""
    v_and_b32 v4, 7, v0
    v_lshrrev_b32 v5, 1, v4                ; g
    v_and_b32 v4, 1, v4                    ; a
    v_lshrrev_b32 v6, 3, v0
    s_lshl_b32 s36, s3, 3
    v_add_u32 v6, s36, v6                  ; trow
    v_lshlrev_b32 v7, 4, v4
    v_lshl_add_u32 v7, v5, 2, v7           ; 16a+4g
    s_and_b32 s36, s21, 1
    s_lshl_b32 s36, s36, 4
    v_subrev_u32 v7, s36, v7
    v_mul_u32_u24 v8, 296, v6
    v_lshl_add_u32 v8, v7, 1, v8
    s_lshl_b32 s36, s20, 7
    v_add_u32 v9, s36, v6
    v_lshlrev_b32 v9, 6, v9
    v_lshl_add_u32 v9, v5, 4, v9
    v_lshl_add_u32 v9, v4, 3, v9
    s_mul_i32 s36, s21, 9
    s_lshr_b32 s36, s36, 1
    s_add_u32 s36, s36, 144
    s_lshl_b32 s36, s36, 17
    v_mov_b32 v10, 0x7f000000
    v_cmp_gt_i32 vcc, 0, v7
    s_nop 1
    v_cndmask_b32 v11, v9, v10, vcc
    v_max_i32 v12, 0, v8
    v_add_u32 v13, 128, v7
    v_cmp_le_i32 vcc, 144, v13
    s_nop 1
    v_cndmask_b32 v13, v9, v10, vcc
    s_waitcnt lgkmcnt(0)
    s_barrier
    """)
    for b in range(5):
        for h in range(2):
            ad = 12 if b == 0 else 8
            a(f"ds_read_b64 v[{16+4*b+2*h}:{17+4*b+2*h}], v{ad} offset:{h*64*296 + 64*b}")
    for b in range(5):
        a(f"s_waitcnt lgkmcnt({8-2*b})")
        vo = 11 if b == 0 else (13 if b == 4 else 9)
        for h in range(2):
            a(f"buffer_store_dwordx2 v[{16+4*b+2*h}:{17+4*b+2*h}], v{vo}, s[16:19], s36 offen offset:{h*4096}" if h*4096 < 4096 else
              f"s_add_u32 s38, s36, 4096\n    buffer_store_dwordx2 v[{16+4*b+2*h}:{17+4*b+2*h}], v{vo}, s[16:19], s38 offen")
        a(f"s_add_u32 s36, s36, {KBS}")
    stamp(a, 5)
    a("s_waitcnt vmcnt(0)")
    stamp(a, 6)
    stamp_dump(a, 7)
    a("s_endpgm")

W_REG = 9216
def gen_g2(a):
    kernel_header(a, "g2_kernel")
    a("""
    s_cmp_ge_u32 s2, 256
    s_cbranch_scc1 G2_END
    s_load_dwordx2 s[4:5], s[0:1], 72      ; ws
    s_load_dwordx2 s[10:11], s[0:1], 0     ; x
    s_load_dwordx2 s[40:41], s[0:1], 56    ; out
    v_lshrrev_b32 v1, 6, v0
    v_and_b32 v0, 63, v0
    s_nop 0
    v_readfirstlane_b32 s3, v1             ; wave
    s_and_b32 s20, s2, 7
    s_lshl_b32 s20, s20, 2
    s_lshr_b32 s21, s2, 3
    s_and_b32 s22, s21, 3
    s_add_u32 s20, s20, s22                ; mi = 4x + (q&3)
    s_lshr_b32 s21, s21, 2                 ; ni
    s_waitcnt lgkmcnt(0)
    """)
    srd(a, 16, 4, HC_BYTES, HC_OFF)
    a(f"s_mul_i32 s36, s21, {W2P_NI}")
    a(f"s_add_u32 s24, s4, {hex(W2P_OFF)}")
    a("s_addc_u32 s25, s5, 0")
    a("s_add_u32 s24, s24, s36")
    a("s_addc_u32 s25, s25, 0")
    a(f"s_mov_b32 s26, {W2P_NI}")
    a("s_mov_b32 s27, 0x00020000")
    srd(a, 44, 10, 2048 * 1152)
    srd(a, 48, 40, 2048 * 1152)
    a(f"""
    v_lshrrev_b32 v10, 2, v0
    v_and_b32 v11, 3, v0
    v_lshrrev_b32 v12, 4, v0
    v_sub_u32 v12, 4, v12
    v_and_b32 v12, 3, v12
    v_xor_b32 v11, v11, v12
    v_lshlrev_b32 v2, 6, v10
    v_lshl_add_u32 v2, v11, 4, v2
    s_lshl_b32 s52, s3, 17
    s_lshl_b32 s36, s20, 12                ; 64*mi*64
    s_add_u32 s52, s52, s36
    s_mul_i32 s53, s3, 4608
    s_mul_i32 s54, s3, {4*W_REG}
    v_lshlrev_b32 v3, 4, v0
    v_add_u32 v7, 4096, v3
    v_mov_b32 v10, 0x7f000000
    v_cmp_gt_u32 vcc, 32, v0
    s_nop 1
    v_cndmask_b32 v7, v10, v7, vcc
    """)
    def dma(buf):
        a(f"""
        s_add_u32 m0, s54, {buf*W_REG}
        s_nop 0
        buffer_load_dwordx4 v2, s[16:19], s52 offen lds
        buffer_load_dwordx4 v2, s[16:19], s52 offen offset:1024 lds
        buffer_load_dwordx4 v2, s[16:19], s52 offen offset:2048 lds
        buffer_load_dwordx4 v2, s[16:19], s52 offen offset:3072 lds
        s_add_u32 m0, s54, {buf*W_REG+4096}
        s_add_u32 s52, s52, {4*KBS}
        buffer_load_dwordx4 v3, s[24:27], s53 offen lds
        buffer_load_dwordx4 v3, s[24:27], s53 offen offset:1024 lds
        buffer_load_dwordx4 v3, s[24:27], s53 offen offset:2048 lds
        buffer_load_dwordx4 v3, s[24:27], s53 offen offset:3072 lds
        s_add_u32 m0, s54, {buf*W_REG+8192}
        s_nop 0
        buffer_load_dwordx4 v7, s[24:27], s53 offen lds
        s_add_u32 s53, s53, {4*4608}
        """)
    stamp(a, 0)
    dma(0)
    a(f"""
    v_and_b32 v10, 15, v0
    v_lshrrev_b32 v11, 2, v10
    v_sub_u32 v11, 4, v11
    v_and_b32 v11, 3, v11
    v_lshrrev_b32 v12, 4, v0
    v_xor_b32 v11, v11, v12
    v_lshlrev_b32 v8, 6, v10
    v_lshl_add_u32 v8, v11, 4, v8
    v_lshrrev_b32 v13, 2, v0
    v_and_b32 v13, 3, v13
    v_lshl_add_u32 v13, v12, 2, v13
    v_lshlrev_b32 v9, 5, v13
    v_and_b32 v14, 3, v0
    v_lshl_add_u32 v9, v14, 3, v9
    v_add_u32 v9, 4096, v9
    v_lshlrev_b32 v6, 4, v13
    v_lshl_add_u32 v6, v14, 3, v6
    v_add_u32 v6, 8192, v6
    v_add_u32 v8, s54, v8
    v_add_u32 v9, s54, v9
    v_add_u32 v6, s54, v6
    """)
    ACC = 64
    for r in range(80):
        a(f"v_mov_b32 v{ACC+r}, 0")
    dma(1)
    dma(2)
    T = [16 + 4 * t for t in range(4)]
    W = [32 + 4 * j for j in range(5)]
    a("s_mov_b32 s34, 0")
    stamp(a, 1)
    a("s_waitcnt vmcnt(18)")
    stamp(a, 2)
    def step(buf):
        bo = buf * W_REG
        a("s_waitcnt vmcnt(18)")
        for tt in range(4):
            a(f"ds_read_b128 v[{T[tt]}:{T[tt]+3}], v8 offset:{bo+1024*tt}")
        for j in range(4):
            a(f"ds_read_b64_tr_b16 v[{W[j]}:{W[j]+1}], v9 offset:{bo+1024*j}")
            a(f"ds_read_b64_tr_b16 v[{W[j]+2}:{W[j]+3}], v9 offset:{bo+1024*j+512}")
        a(f"ds_read_b64_tr_b16 v[{W[4]}:{W[4]+1}], v6 offset:{bo}")
        a(f"ds_read_b64_tr_b16 v[{W[4]+2}:{W[4]+3}], v6 offset:{bo+256}")
        dma((buf + 3) % 4)
        for j in range(5):
            a(f"s_waitcnt lgkmcnt({2*(4-j)})")
            for tt in range(4):
                acc = ACC + (j * 4 + tt) * 4
                a(f"v_mfma_f32_16x16x32_bf16 v[{acc}:{acc+3}], v[{W[j]}:{W[j]+3}], v[{T[tt]}:{T[tt]+3}], v[{acc}:{acc+3}]")
    a.label("G2_LOOP")
    for b in range(4):
        step(b)
    a("""
    s_add_u32 s34, s34, 1
    s_cmp_lt_u32 s34, 10
    s_cbranch_scc1 G2_LOOP
    """)
    step(0)
    a("""
    s_waitcnt vmcnt(0)
    s_barrier
    """)
    stamp(a, 3)
    a("""
    s_mul_i32 s36, s3, 20480
    v_lshlrev_b32 v10, 4, v0
    v_add_u32 v10, s36, v10
    s_nop 7
    """)
    for tile in range(20):
        acc = ACC + tile * 4
        a(f"ds_write_b128 v10, v[{acc}:{acc+3}] offset:{tile*1024}")
    a("""
    v_and_b32 v11, 15, v0
    s_lshl_b32 s36, s20, 6
    s_lshl_b32 s37, s3, 4
    s_add_u32 s36, s36, s37
    v_add_u32 v11, s36, v11
    v_mul_u32_u24 v11, 1152, v11
    v_lshrrev_b32 v12, 4, v0
    v_lshl_add_u32 v11, v12, 3, v11
    s_mul_i32 s36, s21, 144
    v_add_u32 v11, s36, v11
    v_add_u32 v13, 128, v11
    v_mov_b32 v14, 0x7f000000
    v_cmp_gt_u32 vcc, 32, v0
    s_nop 1
    v_cndmask_b32 v13, v14, v13, vcc
    """)
    for j in range(4):
        a(f"buffer_load_dwordx2 v[{16+2*j}:{17+2*j}], v11, s[44:47], 0 offen offset:{32*j}")
    a("buffer_load_dwordx2 v[24:25], v13, s[44:47], 0 offen")
    a("""
    s_waitcnt lgkmcnt(0)
    s_barrier
    s_lshl_b32 s36, s3, 10
    v_lshlrev_b32 v10, 4, v0
    v_add_u32 v10, s36, v10
    """)
    a("v_add_u32 v15, 40960, v10")
    for j in range(5):
        for s_ in range(4):
            r = 64 + (j * 4 + s_) * 4
            ad = 10 if s_ < 2 else 15
            a(f"ds_read_b128 v[{r}:{r+3}], v{ad} offset:{(s_&1)*20480 + j*4096}")
    a("s_waitcnt vmcnt(0)")
    for j in range(5):
        a(f"s_waitcnt lgkmcnt({min(15, 4*(4-j))})")
        r = 64 + j * 16
        for e in range(4):
            a(f"v_add_f32 v{r+e}, v{r+e}, v{r+4+e}")
            a(f"v_add_f32 v{r+8+e}, v{r+8+e}, v{r+12+e}")
            a(f"v_add_f32 v{r+e}, v{r+e}, v{r+8+e}")
        x = 16 + 2 * j
        a(f"""
        v_lshlrev_b32 v30, 16, v{x}
        v_and_b32 v31, 0xffff0000, v{x}
        v_lshlrev_b32 v32, 16, v{x+1}
        v_and_b32 v33, 0xffff0000, v{x+1}
        v_add_f32 v{r}, v{r}, v30
        v_add_f32 v{r+1}, v{r+1}, v31
        v_add_f32 v{r+2}, v{r+2}, v32
        v_add_f32 v{r+3}, v{r+3}, v33
        v_cvt_pk_bf16_f32 v{34+2*j}, v{r}, v{r+1}
        v_cvt_pk_bf16_f32 v{35+2*j}, v{r+2}, v{r+3}
        """)
        if j < 4:
            a(f"buffer_store_dwordx2 v[{34+2*j}:{35+2*j}], v11, s[48:51], 0 offen offset:{32*j}")
        else:
            a(f"buffer_store_dwordx2 v[{34+2*j}:{35+2*j}], v13, s[48:51], 0 offen")
    stamp(a, 4)
    a("s_waitcnt vmcnt(0)")
    stamp(a, 5)
    if os.environ.get("STAMP_G2"): stamp_dump(a, 6)
    a.label("G2_END")
    a("s_endpgm")

def main(path):
    a = A()
    hdr = open("cdna_kernels/" + NAME + ".s.ref").read().split("; Override launch")[0]
    out = hdr
    out += f"; @launch kernel=ln_kernel grid=(976,1,1) block=(64,1,1) lds=0\n"
    out += "; @launch kernel=g1_kernel grid=(256,1,1) block=(512,1,1) lds=163840\n"
    out += "; @launch kernel=g2_kernel grid=(256,1,1) block=(256,1,1) lds=147456\n"
    out += '.amdgcn_target "amdgcn-amd-amdhsa--gfx950"\n.text\n'
    gen_ln(a)
    gen_g1(a)
    gen_g2(a)
    out += a.text()
    out += '.section .rodata,"a"\n.p2align 6\n'
    out += kd("ln_kernel", 136)
    out += ".p2align 6\n" + kd("g1_kernel", 256)
    out += ".p2align 6\n" + kd("g2_kernel", 144)
    open(path, "w").write(out)

if __name__ == "__main__":
    main(sys.argv[1] if len(sys.argv) > 1 else "cdna_kernels/" + NAME + ".s")
```
